```python
import torch

def _softmax(x, axis=-1):
    return torch.softmax(x, dim=axis)

def _gelu(x):
    return torch.nn.functional.gelu(x, approximate='tanh')

def _silu(x):
    return torch.nn.functional.silu(x)

def _sigmoid(x):
    return torch.sigmoid(x)

def _layernorm(x, axis=-1, eps=1e-05):
    m = x.mean(dim=axis, keepdim=True)
    v = x.var(dim=axis, keepdim=True, unbiased=False)
    return (x - m) / torch.sqrt(v + eps)

def _scatter_add(tgt, idx, src, axis=0):
    return tgt.clone().index_add_(axis, idx, src)

def _segment_sum(src, seg, n):
    out = torch.zeros((n,) + src.shape[1:], dtype=src.dtype)
    return out.index_add_(0, seg, src)

def _pad(x, pw):
    flat = tuple((v for pair in reversed(pw) for v in pair))
    return torch.nn.functional.pad(x, flat)
kernel_name = 'adaLN_cond__ssm_conv_s4d__moe_arch_mod__prompt'

def setup_inputs():

    _w = lambda a: (lambda t: t.to(torch.bfloat16) if t.is_floating_point() else t)(torch.as_tensor(a))

    def _A_setup():
        Bsz, L, D, N = (1, 2048, 512, 128)
        return {'u': _w((lambda *s: torch.randn(*s, dtype=torch.bfloat16) * 0.05)(Bsz, L, D)), 'log_A_real': _w((lambda *s: torch.randn(*s, dtype=torch.bfloat16) * 3.2)(D, N) * 0.5), 'A_imag': _w((lambda *s: torch.randn(*s, dtype=torch.bfloat16) * 0.1)(D, N) * 3.14), 'C_real': _w((lambda *s: torch.randn(*s, dtype=torch.bfloat16) * 0.4)(D, N) / N ** 0.5), 'C_imag': _w((lambda *s: torch.randn(*s, dtype=torch.bfloat16) * 0.4)(D, N) / N ** 0.5), 'log_dt': _w((lambda *s: torch.randn(*s, dtype=torch.bfloat16) * 0.1)(D) * 0.5 - 4.0), 'D_skip': _w((lambda *s: torch.randn(*s, dtype=torch.bfloat16) * 0.1)(D))}
    _A_in = _A_setup()

    def _B_setup():
        B, S, D, F, C = (1, 2048, 512, 1376, 2)
        return {'x': _w((lambda *s: torch.randn(*s, dtype=torch.bfloat16) * 0.05)(B, S, D)), 'w_r': _w((lambda *s: torch.randn(*s, dtype=torch.bfloat16) * 0.05)(D)), 'w_gate': _w((lambda *s: torch.randn(*s, dtype=torch.bfloat16) * 0.05)(D, F)), 'w_up': _w((lambda *s: torch.randn(*s, dtype=torch.bfloat16) * 0.05)(D, F)), 'w_down': _w((lambda *s: torch.randn(*s, dtype=torch.bfloat16) * 0.05)(F, D))}
    _B_in = _B_setup()
    return {'A_u': _A_in['u'], 'A_log_A_real': _A_in['log_A_real'], 'A_A_imag': _A_in['A_imag'], 'A_C_real': _A_in['C_real'], 'A_C_imag': _A_in['C_imag'], 'A_log_dt': _A_in['log_dt'], 'A_D_skip': _A_in['D_skip'], 'B_x': _B_in['x'], 'B_w_r': _B_in['w_r'], 'B_w_gate': _B_in['w_gate'], 'B_w_up': _B_in['w_up'], 'B_w_down': _B_in['w_down'], 'c': _w((lambda *s: torch.randn(*s, dtype=torch.bfloat16) * 0.1)(1, 512) * 8.0), 'w_mod': _w((lambda *s: torch.randn(*s, dtype=torch.bfloat16) * 0.1)(512, 6 * 512) * 512 ** (-0.5) * 8.0)}

def reference(A_u, A_log_A_real, A_A_imag, A_C_real, A_C_imag, A_log_dt, A_D_skip, B_x, B_w_r, B_w_gate, B_w_up, B_w_down, c, w_mod):

    def _A_ref(u, log_A_real, A_imag, C_real, C_imag, log_dt, D_skip):
        L = u.shape[1]
        dt = torch.exp(log_dt)
        A = -torch.exp(log_A_real) + 1j * A_imag
        C = (C_real + 1j * C_imag) * dt[:, None]
        pos = (lambda x, dt: x.to(dt))(torch.arange(L), log_dt.dtype)
        P = torch.exp((A * dt[:, None])[:, :, None] * pos[None, None, :])
        K = 2.0 * torch.einsum('dn,dnl->dl', C, P).real
        L2 = 2 * L
        u_t = (lambda x, *d: x.permute(*d))(u, 0, 2, 1)
        Kf = (lambda x, *a, **k: torch.fft.rfft(x.float(), *a, **k))(K, L2)
        Uf = (lambda x, *a, **k: torch.fft.rfft(x.float(), *a, **k))(u_t, L2)
        y = (lambda x, *a, **k: torch.fft.irfft(x, *a, **k).to(torch.bfloat16))(Uf * Kf[None, :, :], L2)[:, :, :L]
        y = (lambda x, *d: x.permute(*d))(y, 0, 2, 1)
        return y + u * D_skip[None, None, :]

    def _B_ref(x, w_r, w_gate, w_up, w_down):
        B, S, D = x.shape
        C = 2
        r = x @ w_r
        idx = torch.argsort(-r, axis=-1)[:, :C]
        idx_e = (lambda x, n, axis: torch.repeat_interleave(x, n, dim=axis))(idx.reshape(B, C, 1), D, axis=2)
        x_sel = (lambda x, i, axis: torch.take_along_dim(x, i, dim=axis))(x, idx_e, axis=1)
        g = _silu(x_sel @ w_gate)
        u = x_sel @ w_up
        y = g * u @ w_down
        r_sel = _sigmoid((lambda x, i, axis: torch.take_along_dim(x, i, dim=axis))(r, idx, axis=1))
        y = y * r_sel.reshape(B, C, 1)
        b_off = (torch.arange(B) * S).reshape(B, 1)
        flat_idx = (idx + b_off).reshape(B * C)
        zero = (x * 0.0).reshape(B * S, D)
        upd = _scatter_add(zero, flat_idx, y.reshape(B * C, D), axis=0)
        return x + upd.reshape(B, S, D)
    x = A_u
    mod = (_silu(c) @ w_mod).reshape(c.shape[0], 6, 1, -1)
    sa, ca, ga, sb, cb, gb = (mod[:, 0].clone(), mod[:, 1].clone(), mod[:, 2].clone(), mod[:, 3].clone(), mod[:, 4].clone(), mod[:, 5].clone())
    h = _layernorm(x, axis=-1) * (1 + ca) + sa
    x = x + ga * _A_ref(h, A_log_A_real, A_A_imag, A_C_real, A_C_imag, A_log_dt, A_D_skip)
    h = _layernorm(x, axis=-1) * (1 + cb) + sb
    x = x + gb * _B_ref(h, B_w_r, B_w_gate, B_w_up, B_w_down)
    return x
```

```python
import re

_REG = re.compile(r'(?<![\w.])(-?|abs\()?([vsa])(?:(\d+)|\[(\d+):(\d+)\])')

def regs_in(tok):
    out = set()
    tok = tok.strip()
    if tok in ('vcc', 'vcc_lo', 'vcc_hi'):
        return {('s', 'vcc')}
    if tok in ('exec', 'exec_lo', 'exec_hi'):
        return {('s', 'exec')}
    if tok == 'm0':
        return {('s', 'm0')}
    m = re.fullmatch(r'-?(?:abs\()?\|?([vsa])(?:(\d+)|\[(\d+):(\d+)\])\|?\)?', tok)
    if m:
        k = m.group(1)
        if m.group(2) is not None:
            out.add((k, int(m.group(2))))
        else:
            for r in range(int(m.group(3)), int(m.group(4)) + 1):
                out.add((k, r))
    return out

TRANS = ('v_exp_f32', 'v_log_f32', 'v_rcp_f32', 'v_rsq_f32', 'v_sqrt_f32', 'v_sin_f32', 'v_cos_f32', 'v_rcp_iflag_f32')

class Ins:
    def __init__(self, text):
        self.text = text
        t = text.split(';')[0].strip()
        self.is_label = t.endswith(':')
        self.is_dir = t.startswith('.') and not self.is_label
        self.mn = '' if (self.is_label or self.is_dir or not t) else t.split()[0]
        rest = t[len(self.mn):].strip() if self.mn else ''
        ops = [o.strip() for o in rest.split(',')] if rest else []
        if ops:
            last = ops[-1].split()
            self.mods = ' '.join(last[1:]) if len(last) > 1 else ''
            ops[-1] = last[0] if last else ''
        else:
            self.mods = ''
        clean = []
        for o in ops:
            if re.match(r'^[\]\d]', o) and clean and ('[' in clean[-1] and ']' not in clean[-1]):
                clean[-1] += ',' + o
            else:
                clean.append(o)
        self.ops = clean
        self.full = t
        self.w, self.r = self._rw()

    def _rw(self):
        mn, ops = self.mn, self.ops
        w, r = set(), set()
        if not mn:
            return w, r
        R = lambda i: regs_in(ops[i]) if i < len(ops) else set()
        allr = lambda s: set().union(*[R(i) for i in range(s, len(ops))]) if len(ops) > s else set()
        if mn.startswith('v_mfma') or mn.startswith('v_smfmac'):
            w = R(0); r = allr(1)
        elif mn.startswith('v_cmp'):
            w = R(0); r = allr(1)
            if mn.startswith('v_cmpx'): w |= {('s', 'exec')}
        elif mn.startswith('v_readlane') or mn.startswith('v_readfirstlane'):
            w = R(0); r = allr(1)
        elif mn.startswith('v_permlane') and 'swap' in mn:
            w = R(0) | R(1); r = R(0) | R(1)
        elif mn.startswith(('v_add_co', 'v_sub_co', 'v_addc_co', 'v_subb_co', 'v_subrev_co')):
            w = R(0) | R(1); r = allr(2)
        elif mn.startswith('v_'):
            w = R(0); r = allr(1)
            if mn.startswith(('v_fmac', 'v_dot2c', 'v_pk_fmac', 'v_writelane', 'v_mac')) or 'dpp' in mn or 'dpp' in self.full or 'row_' in self.full or 'quad_perm' in self.full or 'sdwa' in mn:
                r |= R(0)
            if mn.startswith('v_cndmask') and len(ops) == 3:
                r |= {('s', 'vcc')}
            if mn.startswith('v_cvt') and 'op_sel' in self.full: r |= R(0)
        elif mn.startswith('ds_'):
            if mn.startswith(('ds_read', 'ds_bpermute', 'ds_permute', 'ds_swizzle')) or '_rtn' in mn:
                w = R(0); r = allr(1)
                if 'd16' in mn: r |= R(0)
            else:
                r = allr(0)
            if 'addtid' in mn: r |= {('s', 'm0')}
        elif mn.startswith(('global_load', 'buffer_load', 'flat_load')):
            if ' lds' in ' ' + self.full.replace(',', ' ') and mn.startswith('buffer_load') and re.search(r'\blds\b', self.full):
                r = allr(0) | {('s', 'm0')}
            elif mn.startswith('global_load_lds'):
                r = allr(0) | {('s', 'm0')}
            else:
                w = R(0); r = allr(1)
                if 'd16' in mn: r |= R(0)
        elif mn.startswith(('global_store', 'buffer_store', 'flat_store')):
            r = allr(0)
        elif mn.startswith(('global_atomic', 'buffer_atomic')):
            if 'sc0' in self.full: w = R(0); r = allr(1) if mn.startswith('global') else allr(0)
            else: r = allr(0)
        elif mn.startswith('s_'):
            if mn.startswith(('s_cmp', 's_cbranch', 's_branch', 's_waitcnt', 's_nop', 's_barrier', 's_endpgm', 's_sleep', 's_setprio', 's_bitcmp')):
                r = allr(0)
            else:
                w = R(0); r = allr(1)
                if 'saveexec' in mn: w |= {('s', 'exec')}
        return w, r

    @property
    def valu(self): return self.mn.startswith('v_') and not self.mfma
    @property
    def mfma(self): return self.mn.startswith(('v_mfma', 'v_smfmac'))
    @property
    def dpp(self): return self.valu and ('row_' in self.full or 'quad_perm' in self.full or 'wave_' in self.full)
    @property
    def vmem(self): return self.mn.startswith(('global_', 'buffer_', 'flat_'))
    @property
    def ds(self): return self.mn.startswith('ds_')
    @property
    def trans(self): return any(self.mn.startswith(t) for t in TRANS)
    @property
    def states(self):
        if self.is_label or self.is_dir or not self.mn: return 0
        if self.mn == 's_nop': return int(self.ops[0], 0) + 1
        return 1

def mfma_passes(mn):
    if '32x32x16' in mn: return 8
    if '16x16x32' in mn: return 4
    if '16x16x4_f32' in mn: return 8
    if '32x32x2_f32' in mn: return 16
    raise ValueError(mn)

def need(p, c):
    n = 0
    V = lambda s: {x for x in s if x[0] in 'va'}
    S = lambda s: {x for x in s if x[0] == 's'}
    if p.valu:
        pw_v, pw_s = V(p.w), S(p.w)
        if pw_v:
            if c.dpp and pw_v & V(c.r): n = max(n, 2)
            if c.mn.startswith(('v_readlane', 'v_readfirstlane')) and pw_v & V(c.r): n = max(n, 1)
            if c.mn.startswith('v_permlane') and pw_v & V(c.r): n = max(n, 2)
            if c.mfma and pw_v & V(c.r): n = max(n, 2)
            if p.trans and c.valu and not c.trans and pw_v & V(c.r): n = max(n, 1)
            if p.trans and c.trans and pw_v & V(c.r): n = max(n, 1)
            if ('sdwa' in p.mn or 'op_sel' in p.full and p.mn.startswith('v_cvt')) and c.valu and pw_v & (V(c.r) | V(c.w)): n = max(n, 1)
        if pw_s:
            if ('s', 'exec') in pw_s:
                if c.dpp: n = max(n, 5)
                if c.mfma: n = max(n, 4)
                if c.mn.startswith(('v_readlane', 'v_readfirstlane', 'v_writelane', 'v_permlane')): n = max(n, 4)
                if c.valu and ('s', 'exec') in S(c.r): n = max(n, 2)
            if c.vmem and pw_s & S(c.r): n = max(n, 5)
            if c.valu and pw_s & S(c.r):
                n = max(n, 2)
                if c.mn.startswith(('v_readlane', 'v_writelane')) and len(c.ops) > 2 and regs_in(c.ops[2]) & pw_s: n = max(n, 4)
            if c.mn.startswith('s_') and not c.mn.startswith(('s_waitcnt', 's_nop')) and pw_s & S(c.r): n = max(n, 4)
    if p.mn.startswith('s_') and ('s', 'm0') in p.w:
        if ('s', 'm0') in c.r: n = max(n, 1)
    if p.mn.startswith('s_') and ('s', 'exec') in p.w and c.dpp:
        n = max(n, 1)
    if p.mfma:
        ps = mfma_passes(p.mn)
        d = V(p.w)
        if c.mfma:
            cC = V(regs_in(c.ops[3])); cAB = V(regs_in(c.ops[1])) | V(regs_in(c.ops[2]))
            if d & cAB: n = max(n, {4: 8, 8: 12, 16: 20}[ps])
            if d & cC and not (cC == d and mfma_passes(c.mn) == ps): n = max(n, {4: 6, 8: 10, 16: 18}[ps])
        elif (c.valu or c.vmem or c.ds) and d & (V(c.r) | V(c.w)):
            n = max(n, {4: 8, 8: 12, 16: 20}[ps])
        srcC = V(regs_in(p.ops[3]))
        if c.valu and srcC & V(c.w): n = max(n, {4: 3, 8: 7, 16: 15}[ps])
    if p.vmem and ('store' in p.mn) and ('x3' in p.mn or 'x4' in p.mn):
        data = V(p.r)
        if (c.valu or c.ds or c.vmem) and data & V(c.w): n = max(n, 2)
    return n

class Asm:
    def __init__(self):
        self.lines = []
    def __call__(self, text):
        for ln in text.split('\n'):
            ln = ln.strip()
            if ln and not ln.startswith(';'):
                self.lines.append(ln)
    def label(self, name): self.lines.append(name + ':')
    def finalize(self, window=24):
        ins = []
        pads = 0
        for ln in self.lines:
            c = Ins(ln)
            if c.mn:
                req = 0
                dist = 0
                for p in reversed(ins):
                    if dist >= window: break
                    if p.mn:
                        k = need(p, c)
                        if k > dist: req = max(req, k - dist)
                    dist += p.states
                while req > 0:
                    k = min(req, 16)
                    ins.append(Ins(f's_nop {k - 1}')); req -= k; pads += 1
            ins.append(c)
        self.pads = pads
        return '\n'.join(('' if (i.is_label or i.is_dir) else '    ') + i.text for i in ins) + '\n'
```

```python
import sys
sys.path.insert(0, 'gen')
from asmlib import Asm

KN = 'adaLN_cond__ssm_conv_s4d__moe_arch_mod__prompt_kernel'

WS_N    = 0x000000
WS_Z    = 0x200000
WS_MOD  = 0x400000
WS_KEY  = 0x410000
WS_ROWH = 0x420000
WS_ROWX = 0x520000
WS_GU   = 0x620000
WS_WIN  = 0x630000
WS_DBG  = 0x800000

L_T    = 0
TROW   = 544
TCH    = 57 * TROW
CPY    = 4352
KCH    = 8 * CPY
L_U    = 69632
UCH    = 4608
L_ST   = 78848
STROW  = 1088
L_KC   = 87552
KCCH   = 1312
L_ZT   = 90176
L_RED  = 98368
L_W    = 114752
L_MISC = 158784
L_NONCE = L_MISC
L_SC    = L_MISC + 64
L_MP    = L_MISC + 1152
L_KEYS  = L_MISC + 1344
L_WINL  = L_MISC + 1408
LDS_SIZE = 160832
FCPY = [11, 0, 1, 4, 5, 7, 8, 11]

sX, sLAR, sAIM, sCRE, sCIM, sLDT, sDSK = 's[16:17]', 's[18:19]', 's[20:21]', 's[22:23]', 's[24:25]', 's[26:27]', 's[28:29]'
sWR, sWG, sWU, sWD, sCC, sWMOD, sOUT, sDBG, sWS = 's[32:33]', 's[34:35]', 's[36:37]', 's[38:39]', 's[40:41]', 's[42:43]', 's[44:45]', 's[46:47]', 's[48:49]'
sQ, sW, sNONCE = 's3', 's4', 's5'
sTAG = ['s8', 's9', 's10', 's11']
sLDTV, sDSKV = 's12', 's13'

LOG2E = 1.4426950408889634
INV2PI = 0.15915494309189535
import struct
def f2u(x): return struct.unpack('<I', struct.pack('<f', x))[0]
def H(x): return '0x%08x' % (f2u(x))

def cmul(a, d, x, y):
    a(f'v_pk_mul_f32 v[{d}:{d+1}], v[{x}:{x+1}], v[{y}:{y+1}] op_sel:[0,0] op_sel_hi:[1,0]')
    a(f'v_pk_fma_f32 v[{d}:{d+1}], v[{x}:{x+1}], v[{y}:{y+1}], v[{d}:{d+1}] op_sel:[1,1,0] op_sel_hi:[0,1,1] neg_lo:[1,0,0]')

def wave_sum(a, regs):
    for step in ('row_shr:1 row_mask:0xf bank_mask:0xf bound_ctrl:0', 'row_shr:2 row_mask:0xf bank_mask:0xf bound_ctrl:0',
                 'row_shr:4 row_mask:0xf bank_mask:0xf bound_ctrl:0', 'row_shr:8 row_mask:0xf bank_mask:0xf bound_ctrl:0',
                 'row_bcast:15 row_mask:0xa bank_mask:0xf', 'row_bcast:31 row_mask:0xc bank_mask:0xf'):
        for r in regs:
            a(f'v_add_f32_dpp v{r}, v{r}, v{r} {step}')

def rbf(a, d, s, tmp=None):
    a(f'v_cvt_pk_bf16_f32 v{d}, v{s}, v{s}')
    a(f'v_and_b32 v{d}, 0xffff0000, v{d}')

def build(stop=None, prof=False):
    a = Asm()
    nst = [0]
    def stamp(k):
        if prof: a(f's_memrealtime s[{60+2*k}:{61+2*k}]\ns_waitcnt lgkmcnt(0)')
        nst[0] = max(nst[0], k + 1)
    def finish():
        if not prof: return
        a('s_waitcnt lgkmcnt(0)')
        n = 16
        a(f"""
        v_mov_b32 v2, 0
        s_mul_i32 s14, s2, 8
        s_add_u32 s14, s14, {sW}
        s_lshl_b32 s14, s14, 6
        s_add_u32 s14, s14, {WS_DBG + 0x400000}
        v_mov_b32 v2, s14
        """)
        for k in range(0, n, 4):
            for j in range(4): a(f'v_mov_b32 v{8+j}, s{60+2*(k+j)}')
            a(f'global_store_dwordx4 v2, v[8:11], {sWS} offset:{4*k}')
            a('s_nop 1')
        a('s_waitcnt vmcnt(0)')
    vT, vL = 0, 1
    vX = 4
    a(f'''
    s_cmp_ge_u32 s2, 256
    s_cbranch_scc1 L_end
    s_load_dwordx16 s[16:31], s[0:1], 0
    s_load_dwordx16 s[32:47], s[0:1], 64
    s_load_dwordx2 s[48:49], s[0:1], 128
    s_memrealtime s[6:7]
    ''')
    stamp(0)
    a(f'''
    v_and_b32 v{vL}, 63, v0
    v_lshrrev_b32 v2, 6, v0
    s_and_b32 s3, s2, 7
    s_lshl_b32 s3, s3, 5
    s_lshr_b32 s14, s2, 3
    s_add_u32 {sQ}, s3, s14
    v_readfirstlane_b32 {sW}, v2
    ''')
    a(f'''
    s_lshl_b32 s14, {sQ}, 3
    s_add_u32 s14, s14, {sW}
    s_lshl_b32 s14, s14, 10
    v_lshl_add_u32 v2, v{vL}, 4, s14
    v_lshlrev_b32 v3, 4, v0
    s_lshl_b32 s15, {sQ}, 13
    s_add_u32 s15, s15, {WS_Z}
    v_add_u32 v3, s15, v3
    v_mov_b32 v8, 0
    v_mov_b32 v9, 0
    v_mov_b32 v10, 0
    v_mov_b32 v11, 0
    ''')
    a(f'''
    s_lshr_b32 s50, {sW}, 2
    s_lshr_b32 s51, {sW}, 1
    s_and_b32 s51, s51, 1
    s_and_b32 s52, {sW}, 1
    s_lshl_b32 s14, {sQ}, 1
    s_add_u32 s14, s14, s50
    s_lshl_b32 s14, s14, 7
    s_lshl_b32 s15, s51, 6
    s_add_u32 s14, s14, s15
    v_add_lshl_u32 v12, v{vL}, s14, 1
    s_lshl_b32 s15, {sQ}, 2
    s_waitcnt lgkmcnt(0)
    global_load_dwordx4 v[{vX}:{vX+3}], v2, {sX}
    global_store_dwordx4 v3, v[8:11], {sWS} sc1
    global_load_ushort v16, v12, {sLAR}
    global_load_ushort v17, v12, {sAIM}
    global_load_ushort v18, v12, {sCRE}
    global_load_ushort v19, v12, {sCIM}
    s_load_dword {sLDTV}, {sLDT}, s15
    s_load_dword {sDSKV}, {sDSK}, s15
    ''')
    a(f'''
    s_cmp_eq_u32 s2, 0
    s_cselect_b32 s14, {sW}, 1
    s_cmp_eq_u32 s14, 0
    s_cbranch_scc0 L_non0
    s_mul_i32 s6, s6, 0x9E3779B1
    s_or_b32 s6, s6, 1
    v_mov_b32 v13, s6
    v_mov_b32 v14, 0
    global_store_dword v14, v13, {sDBG} sc1
    ''')
    a.label('L_non0')
    a(f'''
    v_mov_b32 v14, 0
    s_cmp_eq_u32 {sW}, 7
    s_cbranch_scc0 L_non1
    global_load_dword v15, v14, {sDBG} sc1
    ''')
    a.label('L_non1')
    a(f"""
    v_cmp_gt_u32 vcc, 64, v0
    s_and_saveexec_b64 s[54:55], vcc
    v_lshrrev_b32 v2, 5, v0
    v_mul_u32_u24 v2, {UCH}, v2
    v_and_b32 v3, 31, v0
    v_lshl_add_u32 v2, v3, 4, v2
    v_add_u32 v2, {L_U}, v2
    ds_write_b128 v2, v[8:11]
    s_mov_b64 exec, s[54:55]
    """)
    vStW, vStTr, vNst = 20, 21, 22
    a(f'''
    s_mul_i32 s14, {sW}, {STROW}
    s_add_u32 s14, s14, {L_ST}
    v_lshl_add_u32 v{vStW}, v{vL}, 4, s14
    v_bfe_u32 v2, v{vL}, 2, 2
    v_mul_u32_u24 v2, {STROW}, v2
    v_lshrrev_b32 v3, 4, v{vL}
    v_lshlrev_b32 v3, 5, v3
    v_and_b32 v13, 3, v{vL}
    v_lshl_add_u32 v3, v13, 3, v3
    s_lshl_b32 s14, {sW}, 7
    s_add_u32 s14, s14, {L_ST}
    v_add3_u32 v{vStTr}, v2, v3, s14
    v_lshrrev_b32 v2, 2, v0
    v_lshlrev_b32 v2, 14, v2
    v_and_b32 v3, 3, v0
    v_lshlrev_b32 v3, 4, v3
    s_lshl_b32 s14, {sQ}, 6
    s_add_u32 s14, s14, {WS_N}
    v_add3_u32 v{vNst}, v2, v3, s14
    s_waitcnt vmcnt(0) lgkmcnt(0)
    ''')
    a(f'''
    s_cmp_ge_u32 {sQ}, 192
    s_cbranch_scc1 L_nomodld
    v_lshrrev_b32 v2, 1, v0
    v_mul_u32_u24 v2, 6144, v2
    v_and_b32 v3, 1, v0
    v_lshlrev_b32 v3, 4, v3
    s_lshl_b32 s14, {sQ}, 5
    v_add3_u32 v2, v2, v3, s14
    v_add_u32 v3, {256 * 6144}, v2
    s_lshl_b32 s14, {sW}, 10
    s_add_u32 s14, s14, {L_W}
    s_mov_b32 m0, s14
    v_lshlrev_b32 v13, 1, v0
    global_load_lds_dwordx4 v2, {sWMOD}
    s_add_u32 s14, s14, 8192
    s_mov_b32 m0, s14
    s_nop 0
    global_load_lds_dwordx4 v3, {sWMOD}
    global_load_ushort v23, v13, {sCC}
    ''')
    a.label('L_nomodld')
    stamp(1)
    a(f'''
    v_mov_b32 v2, 0x3f803f80
    v_dot2_f32_bf16 v24, v{vX}, v2, 0
    v_dot2_f32_bf16 v24, v{vX+1}, v2, v24
    v_dot2_f32_bf16 v24, v{vX+2}, v2, v24
    v_dot2_f32_bf16 v24, v{vX+3}, v2, v24
    ''')
    for i in range(4):
        a(f'v_lshlrev_b32 v{32+2*i}, 16, v{vX+i}')
        a(f'v_and_b32 v{33+2*i}, 0xffff0000, v{vX+i}')
    wave_sum(a, [24])
    a(f'''
    v_readlane_b32 s14, v24, 63
    v_mov_b32 v25, {H(1/512)}
    v_mul_f32 v25, s14, v25
    ''')
    rbf(a, 26, 25)
    for i in range(8):
        a(f'v_sub_f32 v{32+i}, v{32+i}, v26')
    a('v_mul_f32 v24, v32, v32')
    for i in range(1, 8):
        a(f'v_fmac_f32 v24, v{32+i}, v{32+i}')
    wave_sum(a, [24])
    a(f'''
    v_sub_f32 v25, v25, v26
    v_readlane_b32 s14, v24, 63
    v_mul_f32 v25, v25, v25
    v_mov_b32 v27, {H(1/512)}
    v_fma_f32 v25, s14, v27, -v25
    v_max_f32 v25, 0, v25
    ''')
    rbf(a, 25, 25)
    a(f'v_add_f32 v25, {H(1e-5)}, v25')
    rbf(a, 25, 25)
    a('v_sqrt_f32 v25, v25')
    rbf(a, 25, 25)
    a('v_rcp_f32 v25, v25')
    for i in range(8):
        a(f'v_mul_f32 v{32+i}, v{32+i}, v25')
    for i in range(4):
        a(f'v_cvt_pk_f16_f32 v{40+i}, v{32+2*i}, v{33+2*i}')
    for i in range(4):
        a(f'v_add_u32 v{40+i}, 0x00040004, v{40+i}')
    for i in range(4):
        a(f'v_and_b32 v{40+i}, 0xfff8fff8, v{40+i}')
    a(f'ds_write_b128 v{vStW}, v[40:43]')
    a(f'''
    s_cmp_eq_u32 {sW}, 7
    s_cbranch_scc0 L_non2
    s_mov_b32 s14, 0
    ''')
    a.label('L_npoll')
    a(f'''
    v_readfirstlane_b32 s15, v15
    s_cmp_lg_u32 s15, 0
    s_cbranch_scc1 L_ngot
    s_add_u32 s14, s14, 1
    s_cmp_ge_u32 s14, 0x40000
    s_cbranch_scc1 L_ngot
    v_mov_b32 v14, 0
    global_load_dword v15, v14, {sDBG} sc1
    s_waitcnt vmcnt(0)
    s_branch L_npoll
    ''')
    a.label('L_ngot')
    a(f'''
    v_mov_b32 v2, {L_NONCE}
    v_mov_b32 v3, s15
    ds_write_b32 v2, v3
    ''')
    a.label('L_non2')
    a(f'''
    s_waitcnt lgkmcnt(0)
    s_barrier
    v_mov_b32 v2, {L_NONCE}
    ds_read_b32 v3, v2
    ds_read_b64_tr_b16 v[40:41], v{vStTr}
    ds_read_b64_tr_b16 v[42:43], v{vStTr} offset:{4*STROW}
    s_waitcnt lgkmcnt(2)
    v_readfirstlane_b32 {sNONCE}, v3
    ''')
    for k in range(4):
        if k: a(f's_lshr_b32 {sTAG[k]}, {sNONCE}, {3*k}')
        a(f's_and_b32 {sTAG[k]}, {sTAG[k] if k else sNONCE}, 0x00070007')
    a('s_waitcnt lgkmcnt(0)')
    for k in range(4):
        a(f'v_or_b32 v{40+k}, {sTAG[k]}, v{40+k}')
    a(f'global_store_dwordx4 v{vNst}, v[40:43], {sWS} sc1')
    stamp(2)
    if stop == 'ln1':
        a('s_waitcnt vmcnt(0)\ns_branch L_end')

    a(f'''
    s_lshl_b32 s14, s50, 4
    s_lshr_b32 s14, {sLDTV}, s14
    s_lshl_b32 s14, s14, 16
    v_mov_b32 v2, {H(LOG2E)}
    v_mul_f32 v24, s14, v2
    v_exp_f32 v24, v24
    v_lshlrev_b32 v16, 16, v16
    v_mul_f32 v16, v16, v2
    v_exp_f32 v16, v16
    ''')
    rbf(a, 24, 24)
    rbf(a, 16, 16)
    a(f'''
    v_lshlrev_b32 v17, 16, v17
    v_lshlrev_b32 v18, 16, v18
    v_lshlrev_b32 v19, 16, v19
    v_mul_f32 v16, v16, v24
    v_mul_f32 v17, v17, v24
    v_mul_f32 v16, {H(-LOG2E)}, v16
    v_mul_f32 v17, {H(INV2PI)}, v17
    v_add_f32 v24, v24, v24
    v_mul_f32 v26, v18, v24
    v_mul_f32 v27, v19, v24
    ''')
    def Edirect(d, p):
        a(f'''
        v_mul_f32 v2, {H(float(p))}, v16
        v_mul_f32 v3, {H(float(p))}, v17
        v_exp_f32 v2, v2
        v_fract_f32 v3, v3
        v_cos_f32 v{d}, v3
        v_sin_f32 v{d+1}, v3
        v_mul_f32 v{d}, v{d}, v2
        v_mul_f32 v{d+1}, v{d+1}, v2
        ''')
    vTW = 28
    a(f'''
    s_mul_i32 s14, s50, {TCH}
    s_lshl_b32 s15, s51, 8
    s_add_u32 s14, s14, s15
    s_add_u32 s14, s14, {L_T}
    v_lshl_add_u32 v{vTW}, v{vL}, 2, s14
    s_cmp_eq_u32 s52, 0
    s_cbranch_scc0 L_kg1
    ''')
    tmpc = [0]
    def put(reg, row, neg=False):
        t = 30 + (tmpc[0] & 1); tmpc[0] += 1
        a(f'v_cvt_pk_bf16_f32 v{t}, v{reg}, {"-" if neg else ""}v{reg+1}')
        a(f'ds_write_b32 v{vTW}, v{t} offset:{row*TROW}')
    W1, W8, W128 = 32, 34, 36
    Edirect(W1, 1); Edirect(W8, 8); Edirect(W128, 128)
    E = [None, W1] + [40 + 2*i for i in range(6)]
    a(f'v_mov_b32 v30, 0x00003f80')
    a(f'ds_write_b32 v{vTW}, v30 offset:0')
    put(W1, 1)
    for e in range(2, 8):
        cmul(a, E[e], E[e-1], W1); put(E[e], e)
    put(W128, 8)
    for e in range(1, 8):
        d = 52 + 2*(e & 1)
        cmul(a, d, W128, E[e]); put(d, 8 + e)
    put(26, 41, neg=True)
    prev = 26
    for b in range(1, 16):
        d = 56 + 2*(b & 1)
        cmul(a, d, prev, W8); put(d, 41 + b, neg=True); prev = d
    a('s_branch L_kg2')
    a.label('L_kg1')
    W2 = 32; W128 = 36
    Edirect(W2, 2); Edirect(W128, 128)
    E4, E6 = 38, 40
    cmul(a, E4, W2, W2); cmul(a, E6, E4, W2)
    W256, W384, W512 = 42, 44, 46
    cmul(a, W256, W128, W128); put(W256, 16)
    for e, r in ((1, W2), (2, E4), (3, E6)):
        d = 52 + 2*(e & 1); cmul(a, d, W256, r); put(d, 16 + e)
    cmul(a, W384, W256, W128); put(W384, 20)
    for e, r in ((1, W2), (2, E4), (3, E6)):
        d = 52 + 2*(e & 1); cmul(a, d, W384, r); put(d, 20 + e)
    cmul(a, W512, W256, W256); put(W512, 24)
    cmul(a, 52, W512, E4); put(52, 25)
    prev = W512
    for k, row in enumerate((26, 28, 30)):
        d = 48 + 2*(k & 1)
        cmul(a, d, prev, W128); put(d, row)
        cmul(a, 54, d, E4); put(54, row + 1)
        prev = d
    W1024 = 56
    cmul(a, W1024, W512, W512); put(W1024, 32)
    prev = W1024
    for k in range(1, 8):
        d = 48 + 2*(k & 1)
        cmul(a, d, prev, W128); put(d, 32 + k); prev = d
    cmul(a, 52, W1024, W1024); put(52, 40)
    a.label('L_kg2')
    a(f'''
    s_cmp_ge_u32 {sQ}, 192
    s_cbranch_scc1 L_nosc
    s_waitcnt vmcnt(1)
    v_lshlrev_b32 v23, 16, v23
    v_mul_f32 v2, {H(-LOG2E)}, v23
    v_exp_f32 v2, v2
    v_add_f32 v2, 1.0, v2
    v_rcp_f32 v2, v2
    v_mul_f32 v2, v2, v23
    v_cvt_pk_bf16_f32 v2, v2, v2
    v_lshlrev_b32 v3, 1, v0
    v_add_u32 v3, {L_SC}, v3
    ds_write_b16 v3, v2
    ''')
    a.label('L_nosc')
    a('s_waitcnt lgkmcnt(0)\ns_barrier')
    a(f'''
    s_cmp_ge_u32 {sW}, 6
    s_cbranch_scc1 L_modmm
    s_cmp_ge_u32 {sW}, 3
    s_cselect_b32 s14, 1, 0
    s_mul_i32 s15, s14, 3
    s_sub_u32 s15, {sW}, s15
    s_mul_i32 s53, s14, {TCH}
    v_and_b32 v2, 15, v{vL}
    v_lshrrev_b32 v3, 4, v{vL}
    v_mul_u32_u24 v13, {TROW}, v2
    v_lshl_add_u32 v13, v3, 4, v13
    s_mul_i32 s54, s15, {16*TROW}
    s_add_u32 s54, s54, s53
    s_add_u32 s54, s54, {L_T}
    v_add_u32 v14, s54, v13
    s_add_u32 s53, s53, {L_T + 41*TROW}
    v_add_u32 v13, s53, v13
    ''')
    for kk in range(8):
        a(f'ds_read_b128 v[{32+4*kk}:{35+4*kk}], v14 offset:{64*kk}')
        a(f'ds_read_b128 v[{64+4*kk}:{67+4*kk}], v13 offset:{64*kk}')
    a(f'''
    s_cmp_eq_u32 s15, 1
    s_cbranch_scc1 L_kt1
    s_cmp_eq_u32 s15, 2
    s_cbranch_scc1 L_kt2
    v_lshrrev_b32 v24, 1, v3
    v_lshlrev_b32 v24, 7, v24
    v_and_b32 v25, 1, v3
    v_lshl_add_u32 v24, v25, 2, v24
    v_lshl_add_u32 v24, v2, 3, v24
    v_add_u32 v25, 1, v24
    v_add_u32 v26, 2, v24
    v_add_u32 v27, 3, v24
    s_branch L_kt3
    ''')
    a.label('L_kt1')
    a(f'''
    v_lshlrev_b32 v24, 6, v3
    v_lshl_add_u32 v24, v2, 2, v24
    v_add_u32 v24, 256, v24
    v_add_u32 v25, 1, v24
    v_add_u32 v26, 2, v24
    v_add_u32 v27, 3, v24
    v_lshlrev_b32 v30, 6, v3
    v_lshl_add_u32 v30, v2, 1, v30
    v_add_u32 v30, {384 - 128}, v30
    v_cmp_le_u32 vcc, 2, v3
    v_add_u32 v31, 1, v30
    v_cndmask_b32 v24, v24, v30, vcc
    v_cndmask_b32 v25, v25, v31, vcc
    v_add_u32 v30, 32, v30
    v_add_u32 v31, 32, v31
    v_cndmask_b32 v26, v26, v30, vcc
    v_cndmask_b32 v27, v27, v31, vcc
    s_branch L_kt3
    ''')
    a.label('L_kt2')
    a(f'''
    v_lshl_add_u32 v24, v3, 6, v2
    v_add_u32 v24, 512, v24
    v_add_u32 v25, 16, v24
    v_add_u32 v26, 32, v24
    v_add_u32 v27, 48, v24
    v_mov_b32 v30, 648
    v_cmp_le_u32 vcc, 2, v3
    v_cndmask_b32 v24, v24, v30, vcc
    v_cndmask_b32 v25, v25, v30, vcc
    v_cndmask_b32 v26, v26, v30, vcc
    v_cndmask_b32 v27, v27, v30, vcc
    v_mov_b32 v30, 640
    v_cmp_eq_u32 vcc, 32, v{vL}
    v_cndmask_b32 v24, v24, v30, vcc
    ''')
    a.label('L_kt3')
    a(f'''
    s_mul_i32 s14, s14, {KCCH}
    s_add_u32 s14, s14, {L_KC}
    v_lshl_add_u32 v24, v24, 1, s14
    v_lshl_add_u32 v25, v25, 1, s14
    v_lshl_add_u32 v26, v26, 1, s14
    v_lshl_add_u32 v27, v27, 1, s14
    ''')
    for kk in range(8):
        a(f's_waitcnt lgkmcnt({14 - 2*kk})')
        a(f'v_mfma_f32_16x16x32_bf16 v[28:31], v[{32+4*kk}:{35+4*kk}], v[{64+4*kk}:{67+4*kk}], {"0" if kk == 0 else "v[28:31]"}')
    a(f'''
    v_cvt_pk_bf16_f32 v32, v28, v29
    v_cvt_pk_bf16_f32 v33, v30, v31
    ds_write_b16 v24, v32
    ds_write_b16_d16_hi v25, v32
    ds_write_b16 v26, v33
    ds_write_b16_d16_hi v27, v33
    s_branch L_mm_done
    ''')
    a.label('L_modmm')
    a(f'''
    s_cmp_ge_u32 {sQ}, 192
    s_cbranch_scc1 L_mm_done
    s_sub_u32 s14, {sW}, 6
    v_lshrrev_b32 v3, 4, v{vL}
    v_bfe_u32 v2, v{vL}, 2, 2
    v_lshl_add_u32 v2, v3, 2, v2
    v_lshlrev_b32 v2, 5, v2
    v_and_b32 v13, 3, v{vL}
    v_lshl_add_u32 v2, v13, 3, v2
    s_lshl_b32 s15, s14, 13
    s_add_u32 s15, s15, {L_W}
    v_add_u32 v13, s15, v2
    s_lshl_b32 s15, s14, 9
    s_add_u32 s15, s15, {L_SC}
    v_lshl_add_u32 v14, v3, 3, s15
    ''')
    for kk in range(8):
        a(f'ds_read_b64_tr_b16 v[{32+4*kk}:{33+4*kk}], v13 offset:{1024*kk}')
        a(f'ds_read_b64_tr_b16 v[{34+4*kk}:{35+4*kk}], v13 offset:{1024*kk+512}')
        a(f'ds_read_b64 v[{64+4*kk}:{65+4*kk}], v14 offset:{64*kk}')
        a(f'ds_read_b64 v[{66+4*kk}:{67+4*kk}], v14 offset:{64*kk+32}')
        if kk == 2:
            pass
    a('s_waitcnt lgkmcnt(0)')
    for kk in range(8):
        a(f'v_mfma_f32_16x16x32_bf16 v[28:31], v[{64+4*kk}:{67+4*kk}], v[{32+4*kk}:{35+4*kk}], {"0" if kk == 0 else "v[28:31]"}')
    a(f'''
    s_lshl_b32 s14, s14, 6
    s_add_u32 s14, s14, {L_MP}
    v_lshl_add_u32 v2, v{vL}, 2, s14
    v_cmp_gt_u32 vcc, 16, v{vL}
    s_and_saveexec_b64 s[14:15], vcc
    ds_write_b32 v2, v28
    s_mov_b64 exec, s[14:15]
    ''')
    a.label('L_mm_done')
    a('s_waitcnt lgkmcnt(0)\ns_barrier')
    a(f'''
    s_cmp_eq_u32 {sW}, 6
    s_cselect_b32 s14, {sQ}, 255
    s_cmp_ge_u32 s14, 192
    s_cbranch_scc1 L_nomodpub
    v_cmp_gt_u32 vcc, 4, v{vL}
    s_and_saveexec_b64 s[54:55], vcc
    v_lshlrev_b32 v2, 4, v{vL}
    v_add_u32 v3, {L_MP}, v2
    ds_read_b128 v[32:35], v3
    ds_read_b128 v[36:39], v3 offset:64
    s_lshl_b32 s14, {sQ}, 6
    s_add_u32 s14, s14, {WS_MOD}
    v_add_u32 v2, s14, v2
    s_waitcnt lgkmcnt(0)
    v_add_f32 v32, v32, v36
    v_add_f32 v33, v33, v37
    v_add_f32 v34, v34, v38
    v_add_f32 v35, v35, v39
    v_cvt_pk_bf16_f32 v32, v32, v33
    v_cvt_pk_bf16_f32 v34, v34, v35
    v_mov_b32 v33, {sNONCE}
    v_mov_b32 v35, {sNONCE}
    global_store_dwordx4 v2, v[32:35], {sWS} sc1
    s_mov_b64 exec, s[54:55]
    ''')
    a.label('L_nomodpub')
    if stop == 'kc':
        a(f'''
        v_lshlrev_b32 v2, 3, v0
        v_cmp_gt_u32 vcc, {2*KCCH//8}, v0
        s_and_saveexec_b64 s[54:55], vcc
        v_add_u32 v3, {L_KC}, v2
        ds_read_b64 v[32:33], v3
        s_lshl_b32 s14, {sQ}, 12
        s_add_u32 s14, s14, {WS_DBG}
        v_add_u32 v2, s14, v2
        s_waitcnt lgkmcnt(0)
        global_store_dwordx2 v2, v[32:33], {sWS}
        s_mov_b64 exec, s[54:55]
        s_waitcnt vmcnt(0)
        s_branch L_end
        ''')

    stamp(3)
    a(f"""
    v_and_b32 v2, 255, v0
    v_lshrrev_b32 v3, 8, v0
    v_mul_u32_u24 v13, {KCCH}, v3
    v_add_u32 v13, {L_KC}, v13
    v_lshlrev_b32 v14, 3, v2
    v_cmp_gt_u32 vcc, 32, v2
    """)
    for i in range(0, 8, 2):
        a(f"""
        v_add_u32 v24, {i}, v14
        v_add_u32 v25, {i+1}, v14
        v_cvt_f32_u32 v26, v24
        v_cvt_f32_u32 v27, v25
        v_cvt_pk_bf16_f32 v26, v26, v27
        v_lshrrev_b32 v27, 16, v26
        v_and_b32 v26, 0xffff, v26
        v_subrev_u32 v26, 0x4280, v26
        v_subrev_u32 v27, 0x4280, v27
        v_cndmask_b32 v26, v26, v24, vcc
        v_cndmask_b32 v27, v27, v25, vcc
        v_lshl_add_u32 v26, v26, 1, v13
        v_lshl_add_u32 v27, v27, 1, v13
        ds_read_u16 v{40 + i}, v26
        ds_read_u16 v{41 + i}, v27
        """)
    a(f"""
    v_mul_u32_u24 v13, {KCH}, v3
    v_lshl_add_u32 v13, v2, 4, v13
    v_add_u32 v13, {L_T + 16*FCPY[0] + 32}, v13
    s_waitcnt lgkmcnt(0)
    v_lshl_or_b32 v32, v41, 16, v40
    v_lshl_or_b32 v33, v43, 16, v42
    v_lshl_or_b32 v34, v45, 16, v44
    v_lshl_or_b32 v35, v47, 16, v46
    ds_write_b128 v13, v[32:35]
    s_cmp_eq_u32 {sW}, 0
    s_cbranch_scc0 L_nozc
    v_cmp_gt_u32 vcc, 18, v{vL}
    s_and_saveexec_b64 s[54:55], vcc
    v_and_b32 v24, 7, v{vL}
    v_bfe_u32 v25, v{vL}, 3, 1
    v_lshlrev_b32 v26, 2, v24
    v_mov_b32 v27, 0xB875410B
    v_lshrrev_b32 v26, v26, v27
    v_and_b32 v26, 15, v26
    v_mul_u32_u24 v24, {CPY}, v24
    v_lshl_add_u32 v24, v26, 4, v24
    v_mul_u32_u24 v25, {KCH}, v25
    v_add_u32 v24, v24, v25
    v_and_b32 v25, 1, v{vL}
    v_mul_u32_u24 v25, {KCH}, v25
    v_add_u32 v25, {16*FCPY[0] + 16}, v25
    v_cmp_le_u32 vcc, 16, v{vL}
    v_cndmask_b32 v24, v24, v25, vcc
    v_add_u32 v24, {L_T}, v24
    v_mov_b32 v28, 0
    v_mov_b32 v29, 0
    v_mov_b32 v30, 0
    v_mov_b32 v31, 0
    ds_write_b128 v24, v[28:31]
    s_mov_b64 exec, s[54:55]
    """)
    a.label('L_nozc')
    a('s_waitcnt lgkmcnt(0)\ns_barrier')
    a(f"""
    v_subrev_u32 v14, 16, v13
    ds_read_b128 v[32:35], v14
    ds_read_b128 v[36:39], v13
    v_subrev_u32 v14, {16*FCPY[0]}, v14
    s_waitcnt lgkmcnt(0)
    """)
    for i in range(7):
        a(f'v_alignbit_b32 v{48+i}, v{33+i}, v{32+i}, 16')
    for i in range(1, 7):
        a(f'v_alignbit_b32 v{57+i}, v{33+i}, v{32+i}, 16')
        a(f'v_mov_b32 v{41+i}, v{32+i}')
    srcs = {1: 48, 2: 42, 3: 58, 4: 34, 5: 50, 6: 44, 7: 60}
    for sft in range(1, 8):
        a(f'ds_write_b128 v14, v[{srcs[sft]}:{srcs[sft]+3}] offset:{sft*CPY + 16*FCPY[sft]}')
    stamp(4)
    if stop == 'kx':
        a(f"""
        s_waitcnt lgkmcnt(0)
        s_barrier
        v_lshlrev_b32 v2, 4, v0
        s_mul_i32 s14, {sQ}, {2*KCH}
        s_add_u32 s14, s14, {WS_DBG}
        v_add_u32 v3, s14, v2
        s_mov_b32 s15, 0
        """)
        a.label('L_dumpkx')
        a(f"""
        ds_read_b128 v[32:35], v2
        s_waitcnt lgkmcnt(0)
        v_cmp_gt_u32 vcc, {2*KCH}, v2
        s_and_saveexec_b64 s[54:55], vcc
        global_store_dwordx4 v3, v[32:35], {sWS}
        s_mov_b64 exec, s[54:55]
        v_add_u32 v2, 8192, v2
        v_add_u32 v3, 8192, v3
        s_add_u32 s15, s15, 1
        s_cmp_lt_u32 s15, 9
        s_cbranch_scc1 L_dumpkx
        s_waitcnt vmcnt(0)
        s_branch L_end
        """)
    vG, vS = 24, 25
    a(f"""
    s_lshl_b32 s14, {sQ}, 3
    s_add_u32 s14, s14, {WS_MOD}
    v_mov_b32 v2, s14
    s_lshr_b32 s14, {sQ}, 1
    s_lshl_b32 s14, s14, 14
    s_and_b32 s15, {sQ}, 1
    s_lshl_b32 s15, s15, 5
    s_add_u32 s14, s14, s15
    s_add_u32 s14, s14, {WS_N}
    v_lshrrev_b32 v3, 1, v0
    v_lshlrev_b32 v13, 6, v3
    v_and_b32 v14, 1, v0
    v_lshl_add_u32 v13, v14, 4, v13
    v_add_u32 v13, s14, v13
    v_mul_u32_u24 v26, {UCH}, v14
    v_lshl_add_u32 v26, v3, 4, v26
    v_add_u32 v26, {L_U + 512}, v26
    s_mov_b32 s14, 0
    """)
    a.label('L_mpoll')
    a(f"""
    global_load_dwordx2 v[28:29], v2, {sWS} sc1
    global_load_dwordx2 v[30:31], v2, {sWS} offset:2048 sc1
    s_add_u32 s14, s14, 1
    s_waitcnt vmcnt(0)
    v_cmp_ne_u32 vcc, {sNONCE}, v29
    v_cmp_ne_u32 s[54:55], {sNONCE}, v31
    s_or_b64 vcc, vcc, s[54:55]
    s_cmp_ge_u32 s14, 0x40000
    s_cbranch_scc1 L_mgot
    s_cbranch_vccnz L_mpoll
    """)
    a.label('L_mgot')
    a(f"""
    v_cmp_eq_u32 vcc, 1, v14
    v_lshlrev_b32 v27, 16, v28
    v_and_b32 v28, 0xffff0000, v28
    v_cndmask_b32 v{vS}, v27, v28, vcc
    v_lshlrev_b32 v27, 16, v30
    v_and_b32 v30, 0xffff0000, v30
    v_cndmask_b32 v{vG}, v27, v30, vcc
    v_add_f32 v{vG}, 1.0, v{vG}
    """)
    rbf(a, vG, vG)
    stamp(5)
    a('s_mov_b32 s14, 0')
    a.label('L_e1poll')
    a(f"""
    global_load_dwordx4 v[32:35], v13, {sWS} sc1
    s_add_u32 s14, s14, 1
    s_waitcnt vmcnt(0)
    v_xor_b32 v36, {sTAG[0]}, v32
    v_xor_b32 v37, {sTAG[1]}, v33
    v_xor_b32 v38, {sTAG[2]}, v34
    v_xor_b32 v39, {sTAG[3]}, v35
    v_or3_b32 v36, v36, v37, v38
    v_or_b32 v36, v36, v39
    v_and_b32 v36, 0x00070007, v36
    v_cmp_ne_u32 vcc, 0, v36
    s_cmp_ge_u32 s14, 0x40000
    s_cbranch_scc1 L_e1got
    s_cbranch_vccnz L_e1poll
    """)
    a.label('L_e1got')
    stamp(6)
    for k in range(4):
        a(f'v_and_b32 v{32+k}, 0xfff8fff8, v{32+k}')
    for k in range(4):
        a(f'v_fma_mix_f32 v{40+2*k}, v{32+k}, v{vG}, v{vS} op_sel:[0,0,0] op_sel_hi:[1,0,0]')
        a(f'v_fma_mix_f32 v{41+2*k}, v{32+k}, v{vG}, v{vS} op_sel:[1,0,0] op_sel_hi:[1,0,0]')
    for k in range(4):
        a(f'v_cvt_pk_bf16_f32 v{32+k}, v{47-2*k}, v{46-2*k}')
    a(f'ds_write_b128 v26, v[32:35]')
    vA, vB = 2, 3
    a(f"""
    s_lshr_b32 s50, {sW}, 1
    s_and_b32 s50, s50, 1
    s_and_b32 s51, {sW}, 1
    v_and_b32 v13, 15, v{vL}
    v_add_u32 v14, 1, v13
    v_and_b32 v27, 7, v14
    v_lshrrev_b32 v14, 3, v14
    v_lshlrev_b32 v28, 2, v27
    v_mov_b32 v29, 0xB875410B
    v_lshrrev_b32 v28, v28, v29
    v_and_b32 v28, 15, v28
    v_add_u32 v28, v28, v14
    v_mul_u32_u24 v27, {CPY}, v27
    v_lshl_add_u32 v27, v28, 4, v27
    v_lshrrev_b32 v28, 5, v{vL}
    v_bfe_u32 v29, v{vL}, 4, 1
    v_lshlrev_b32 v30, 1, v28
    v_sub_u32 v30, v30, v29
    v_lshlrev_b32 v30, 4, v30
    s_mul_i32 s14, s50, {KCH}
    s_lshl_b32 s15, s51, 8
    s_add_u32 s14, s14, s15
    s_add_u32 s14, s14, {L_T + 32 - 16}
    v_add3_u32 v{vA}, v27, v30, s14
    v_sub_u32 v30, v13, v28
    v_lshlrev_b32 v30, 5, v30
    v_lshl_add_u32 v30, v29, 4, v30
    s_mul_i32 s14, s50, {UCH}
    s_add_u32 s14, s14, {L_U + 512 - 192}
    s_sub_u32 s14, s14, s15
    v_add_u32 v{vB}, s14, v30
    s_waitcnt lgkmcnt(0)
    s_barrier
    """)
    stamp(7)
    a(f"""
    s_cmp_ge_u32 {sW}, 4
    s_cbranch_scc1 L_wpref
    """)
    ACC = 64
    SETS = [(96, 128), (160, 192)]
    def loads(tau):
        A0, B0 = SETS[tau & 1]
        out = []
        for k in range(8):
            out.append(f'ds_read_b128 v[{B0+4*k}:{B0+4*k+3}], v{vB} offset:{512*k + 192 - 64*tau}')
            out.append(f'ds_read_b128 v[{A0+4*k}:{A0+4*k+3}], v{vA} offset:{512*k + 64*tau}')
        return out
    for l in loads(0): a(l)
    for tau in range(4):
        A0, B0 = SETS[tau & 1]
        nxt = loads(tau + 1) if tau < 3 else []
        pairs = [(i, d - i) for d in range(8) for i in range(d + 1)]
        first = set()
        waited = -1
        for n, (i, j) in enumerate(pairs):
            need_idx = 2 * max(i, j) + 1
            if tau == 0 and need_idx > waited:
                a(f's_waitcnt lgkmcnt({15 - need_idx})'); waited = need_idx
            if tau > 0 and n == 0:
                a('s_waitcnt lgkmcnt(0)')
            ct = i + j
            c = f'v[{ACC+4*ct}:{ACC+4*ct+3}]'
            src = '0' if (tau == 0 and ct not in first) else c
            first.add(ct)
            a(f'v_mfma_f32_16x16x32_bf16 {c}, v[{A0+4*j}:{A0+4*j+3}], v[{B0+4*i}:{B0+4*i+3}], {src}')
            if nxt and n >= 2 and n % 2 == 0:
                a(nxt.pop(0))
        assert not nxt
    a(f"""
    s_lshl_b32 s14, {sW}, 12
    s_add_u32 s14, s14, {L_RED}
    v_lshl_add_u32 v13, v{vL}, 4, s14
    s_cmp_eq_u32 s51, 0
    s_cbranch_scc0 L_red1
    """)
    for k in range(4):
        a(f'ds_write_b128 v13, v[{ACC+4*(2*k+1)}:{ACC+4*(2*k+1)+3}] offset:{1024*k}')
    a('s_branch L_red2')
    a.label('L_red1')
    for k in range(4):
        a(f'ds_write_b128 v13, v[{ACC+4*(2*k)}:{ACC+4*(2*k)+3}] offset:{1024*k}')
        a(f'v_mov_b32 v{ACC+8*k}, v{ACC+8*k+4}')
        a(f'v_mov_b32 v{ACC+8*k+1}, v{ACC+8*k+5}')
        a(f'v_mov_b32 v{ACC+8*k+2}, v{ACC+8*k+6}')
        a(f'v_mov_b32 v{ACC+8*k+3}, v{ACC+8*k+7}')
    a.label('L_red2')
    a('s_branch L_convdone')
    a.label('L_wpref')
    a(f"""
    s_sub_u32 s14, {sW}, 4
    s_cmp_lt_u32 {sQ}, 86
    s_cbranch_scc0 L_wp_down
    v_lshrrev_b32 v13, 1, v{vL}
    s_lshl_b32 s15, s14, 7
    v_add_u32 v13, s15, v13
    v_mul_u32_u24 v13, 2752, v13
    v_and_b32 v14, 1, v{vL}
    v_lshl_add_u32 v13, v14, 4, v13
    s_lshl_b32 s15, {sQ}, 5
    v_add_u32 v13, s15, v13
    s_lshl_b32 s14, s14, 12
    s_add_u32 s14, s14, {L_W}
    """)
    for m, ptr in enumerate((sWG, sWU)):
        for i in range(4):
            a(f's_add_u32 s15, s14, {16384*m + 1024*i}')
            a('s_mov_b32 m0, s15')
            if i: a(f'v_add_u32 v14, {i*32*2752}, v13')
            else: a('v_mov_b32 v14, v13')
            a(f'global_load_lds_dwordx4 v14, {ptr}')
    a('s_branch L_convdone')
    a.label('L_wp_down')
    a(f"""
    s_sub_u32 s15, {sQ}, 96
    s_cmp_lt_u32 s15, 32
    s_cbranch_scc0 L_convdone
    v_lshrrev_b32 v13, 1, v{vL}
    s_lshl_b32 s54, s14, 5
    v_add_u32 v13, s54, v13
    v_lshlrev_b32 v13, 10, v13
    v_and_b32 v14, 1, v{vL}
    v_lshl_add_u32 v13, v14, 4, v13
    s_lshl_b32 s15, s15, 5
    v_add_u32 v13, s15, v13
    s_lshl_b32 s54, s14, 10
    s_add_u32 s54, s54, {L_W}
    """)
    for i in range(11):
        if i == 10:
            a('s_cmp_lt_u32 s14, 3\ns_cbranch_scc0 L_convdone')
        a(f's_add_u32 s15, s54, {4096*i}')
        a('s_mov_b32 m0, s15')
        a(f'v_add_u32 v14, {i*128*1024}, v13')
        a(f'global_load_lds_dwordx4 v14, {sWD}')
    a.label('L_convdone')
    a('s_waitcnt lgkmcnt(0)\ns_barrier')
    stamp(8)
    a(f"""
    s_cmp_ge_u32 {sW}, 4
    s_cbranch_scc1 L_epidone
    s_xor_b32 s14, {sW}, 1
    s_lshl_b32 s14, s14, 12
    s_add_u32 s14, s14, {L_RED}
    v_lshl_add_u32 v13, v{vL}, 4, s14
    v_and_b32 v14, 15, v{vL}
    v_lshrrev_b32 v27, 4, v{vL}
    v_lshlrev_b32 v14, 5, v14
    v_lshrrev_b32 v28, 1, v27
    v_lshl_add_u32 v28, v28, 4, v14
    v_and_b32 v29, 1, v27
    v_sub_u32 v29, 1, v29
    v_lshl_add_u32 v28, v29, 3, v28
    s_mul_i32 s14, s50, {UCH}
    s_lshl_b32 s15, s51, 9
    s_add_u32 s14, s14, s15
    s_add_u32 s14, s14, {L_U + 512}
    v_add_u32 v28, s14, v28
    v_lshl_add_u32 v29, v27, 3, v14
    s_lshl_b32 s14, s50, 12
    s_add_u32 s14, s14, s15
    s_add_u32 s14, s14, {L_ZT}
    v_add_u32 v29, s14, v29
    s_lshl_b32 s14, s50, 4
    s_lshr_b32 s14, {sDSKV}, s14
    s_lshl_b32 s14, s14, 16
    """)
    for k in range(4):
        a(f'ds_read_b128 v[{96+4*k}:{99+4*k}], v13 offset:{1024*k}')
        a(f'ds_read_b64 v[{112+2*k}:{113+2*k}], v28 offset:{1024*k}')
    for k in range(4):
        a(f's_waitcnt lgkmcnt({6-2*k})')
        c = ACC + 8*k
        for r in range(4):
            a(f'v_add_f32 v{c+r}, v{c+r}, v{96+4*k+r}')
        h0, h1 = 112 + 2*k, 113 + 2*k
        a(f"""
        v_and_b32 v120, 0xffff0000, v{h1}
        v_lshlrev_b32 v121, 16, v{h1}
        v_and_b32 v122, 0xffff0000, v{h0}
        v_lshlrev_b32 v123, 16, v{h0}
        """)
        for r in range(4):
            a(f'v_fmac_f32 v{c+r}, s14, v{120+r}')
        a(f"""
        v_cvt_pk_bf16_f32 v{124+2*(k&1)}, v{c}, v{c+1}
        v_cvt_pk_bf16_f32 v{125+2*(k&1)}, v{c+2}, v{c+3}
        ds_write_b64 v29, v[{124+2*(k&1)}:{125+2*(k&1)}] offset:{1024*k}
        """)
    a.label('L_epidone')
    a(f"""
    v_lshrrev_b32 v2, 2, v0
    v_bfe_u32 v3, v0, 1, 1
    v_and_b32 v13, 1, v0
    v_lshlrev_b32 v14, 12, v3
    v_lshl_add_u32 v14, v2, 5, v14
    v_lshl_add_u32 v14, v13, 4, v14
    v_add_u32 v14, {L_ZT}, v14
    v_lshlrev_b32 v2, 14, v2
    v_lshl_add_u32 v2, v3, 5, v2
    v_lshl_add_u32 v2, v13, 4, v2
    s_lshl_b32 s14, {sQ}, 6
    s_add_u32 s14, s14, {WS_Z}
    v_add_u32 v2, s14, v2
    s_waitcnt lgkmcnt(0)
    s_barrier
    ds_read_b128 v[32:35], v14
    s_waitcnt lgkmcnt(0)
    v_max_u32 v32, 1, v32
    v_max_u32 v33, 1, v33
    v_max_u32 v34, 1, v34
    v_max_u32 v35, 1, v35
    global_store_dwordx4 v2, v[32:35], {sWS} sc1
    """)
    stamp(9)
    if stop == 'z':
        a('s_waitcnt vmcnt(0)')
        finish()
        a('s_branch L_end')


    GA, SB, G2, GB, GW, XF = 96, 104, 112, 120, 128, 136
    a(f"""
    v_lshlrev_b32 v2, 5, v{vL}
    v_add_u32 v2, {WS_MOD + 2*2048}, v2
    v_add_u32 v13, 4096, v2
    v_lshlrev_b32 v3, 4, v{vL}
    global_load_dwordx4 v[64:67], v3, {sWR}
    s_mov_b32 s14, 0
    """)
    a.label('L_m3poll')
    for sec in range(4):
        base = 'v2' if sec < 2 else 'v13'
        off = (sec & 1) * 2048
        a(f'global_load_dwordx4 v[{32+8*sec}:{35+8*sec}], {base}, {sWS} offset:{off} sc1')
        a(f'global_load_dwordx4 v[{36+8*sec}:{39+8*sec}], {base}, {sWS} offset:{off+16} sc1')
    a(f"""
    s_add_u32 s14, s14, 1
    s_waitcnt vmcnt(0)
    v_mov_b32 v14, 0
    """)
    for g in range(16):
        a(f'v_xor_b32 v27, {sNONCE}, v{33+2*g}')
        a(f'v_or_b32 v14, v14, v27')
    a(f"""
    v_cmp_ne_u32 vcc, 0, v14
    s_cmp_ge_u32 s14, 0x40000
    s_cbranch_scc1 L_m3got
    s_cbranch_vccnz L_m3poll
    """)
    a.label('L_m3got')
    for sec, dst in ((0, GA), (1, SB), (2, G2), (3, GB)):
        for k in range(4):
            src = 32 + 8*sec + 2*k
            a(f'v_lshlrev_b32 v{dst+2*k}, 16, v{src}')
            a(f'v_and_b32 v{dst+2*k+1}, 0xffff0000, v{src}')
    for k in range(8):
        a(f'v_add_f32 v{G2+k}, 1.0, v{G2+k}')
    for k in range(0, 8, 2):
        a(f'v_cvt_pk_bf16_f32 v27, v{G2+k}, v{G2+k+1}')
        a(f'v_lshlrev_b32 v{G2+k}, 16, v27')
        a(f'v_and_b32 v{G2+k+1}, 0xffff0000, v27')
    for k in range(4):
        a(f'v_lshlrev_b32 v{GW+2*k}, 16, v{64+k}')
        a(f'v_and_b32 v{GW+2*k+1}, 0xffff0000, v{64+k}')
        a(f'v_lshlrev_b32 v{XF+2*k}, 16, v{vX+k}')
        a(f'v_and_b32 v{XF+2*k+1}, 0xffff0000, v{vX+k}')
    a(f'v_mul_f32 v27, v{SB}, v{GW}')
    for k in range(1, 8):
        a(f'v_fmac_f32 v27, v{SB+k}, v{GW+k}')
    for k in range(8):
        a(f'v_mul_f32 v{GW+k}, v{GW+k}, v{G2+k}')
    wave_sum(a, [27])
    a(f"""
    v_readlane_b32 s56, v27, 63
    s_lshr_b32 s14, {sQ}, 1
    s_lshl_b32 s14, s14, 14
    s_and_b32 s15, {sQ}, 1
    s_lshl_b32 s15, s15, 4
    s_add_u32 s14, s14, s15
    s_add_u32 s14, s14, {WS_Z}
    v_lshl_add_u32 v2, v0, 5, s14
    v_lshlrev_b32 v3, 1, v0
    v_add_u32 v3, {L_ST}, v3
    s_mov_b32 s14, 0
    """)
    a.label('L_e2poll')
    a(f"""
    global_load_dwordx4 v[32:35], v2, {sWS} sc1
    s_add_u32 s14, s14, 1
    s_waitcnt vmcnt(0)
    v_min3_u32 v36, v32, v33, v34
    v_min_u32 v36, v36, v35
    v_cmp_eq_u32 vcc, 0, v36
    s_cmp_ge_u32 s14, 0x40000
    s_cbranch_scc1 L_e2got
    s_cbranch_vccnz L_e2poll
    """)
    a.label('L_e2got')
    stamp(10)
    for k in range(4):
        a(f'ds_write_b16 v3, v{32+k} offset:{(2*k)*STROW}')
        a(f'ds_write_b16_d16_hi v3, v{32+k} offset:{(2*k+1)*STROW}')
    a(f"""
    s_waitcnt lgkmcnt(0)
    s_barrier
    ds_read_b128 v[32:35], v{vStW}
    s_waitcnt lgkmcnt(0)
    """)
    X1, X1P, DD, H2P, OUTP = 40, 48, 52, 60, 64
    for k in range(4):
        a(f'v_lshlrev_b32 v{X1+2*k}, 16, v{32+k}')
        a(f'v_and_b32 v{X1+2*k+1}, 0xffff0000, v{32+k}')
    for k in range(8):
        a(f'v_fma_f32 v{X1+k}, v{GA+k}, v{X1+k}, v{XF+k}')
    for k in range(4):
        a(f'v_cvt_pk_bf16_f32 v{X1P+k}, v{X1+2*k}, v{X1+2*k+1}')
    a(f"""
    v_mov_b32 v2, 0x3f803f80
    v_dot2_f32_bf16 v24, v{X1P}, v2, 0
    v_dot2_f32_bf16 v24, v{X1P+1}, v2, v24
    v_dot2_f32_bf16 v24, v{X1P+2}, v2, v24
    v_dot2_f32_bf16 v24, v{X1P+3}, v2, v24
    """)
    for k in range(4):
        a(f'v_lshlrev_b32 v{X1+2*k}, 16, v{X1P+k}')
        a(f'v_and_b32 v{X1+2*k+1}, 0xffff0000, v{X1P+k}')
    wave_sum(a, [24])
    a(f"""
    v_readlane_b32 s14, v24, 63
    v_mov_b32 v25, {H(1/512)}
    v_mul_f32 v25, s14, v25
    """)
    rbf(a, 26, 25)
    for k in range(8):
        a(f'v_sub_f32 v{DD+k}, v{X1+k}, v26')
    a(f'v_mul_f32 v24, v{DD}, v{DD}')
    a(f'v_mul_f32 v27, v{DD}, v{GW}')
    for k in range(1, 8):
        a(f'v_fmac_f32 v24, v{DD+k}, v{DD+k}')
        a(f'v_fmac_f32 v27, v{DD+k}, v{GW+k}')
    wave_sum(a, [24, 27])
    a(f"""
    v_sub_f32 v25, v25, v26
    v_readlane_b32 s14, v24, 63
    v_readlane_b32 s15, v27, 63
    v_mul_f32 v25, v25, v25
    v_mov_b32 v27, {H(1/512)}
    v_fma_f32 v25, s14, v27, -v25
    v_max_f32 v25, 0, v25
    """)
    rbf(a, 25, 25)
    a(f'v_add_f32 v25, {H(1e-5)}, v25')
    rbf(a, 25, 25)
    a('v_sqrt_f32 v25, v25')
    rbf(a, 25, 25)
    a(f"""
    v_rcp_f32 v25, v25
    v_mov_b32 v26, s56
    v_mul_f32 v27, s15, v25
    v_add_f32 v27, v27, v26
    v_cvt_pk_bf16_f32 v27, v27, v27
    v_and_b32 v27, 0xffff, v27
    v_xor_b32 v28, 0x8000, v27
    v_xor_b32 v29, 0xffff, v27
    v_cmp_le_u32 vcc, 0x8000, v27
    v_cndmask_b32 v27, v28, v29, vcc
    s_lshl_b32 s14, {sQ}, 3
    s_add_u32 s14, s14, {sW}
    s_sub_u32 s57, 0xffff, s14
    v_lshl_or_b32 v27, v27, 16, s57
    s_lshl_b32 s14, {sW}, 2
    s_add_u32 s14, s14, {L_KEYS}
    v_mov_b32 v28, s14
    ds_write_b32 v28, v27
    """)
    for k in range(8):
        a(f'v_mul_f32 v{DD+k}, v{DD+k}, v25')
    for k in range(8):
        a(f'v_fma_f32 v{DD+k}, v{DD+k}, v{G2+k}, v{SB+k}')
    for k in range(4):
        a(f'v_cvt_pk_bf16_f32 v{H2P+k}, v{DD+2*k}, v{DD+2*k+1}')
    a(f"""
    v_mov_b32 v28, {L_KEYS}
    s_waitcnt lgkmcnt(0)
    s_barrier
    ds_read_b128 v[32:35], v28
    ds_read_b128 v[36:39], v28 offset:16
    s_waitcnt lgkmcnt(0)
    v_max_u32 v2, v32, v33
    v_min_u32 v3, v32, v33
    """)
    for k in range(2, 8):
        a(f"""
        v_min_u32 v13, v2, v{32+k}
        v_max_u32 v2, v2, v{32+k}
        v_max_u32 v3, v3, v13
        """)
    a(f"""
    v_readfirstlane_b32 s58, v2
    v_readfirstlane_b32 s59, v3
    v_readfirstlane_b32 s14, v27
    s_cmp_eq_u32 s14, s58
    s_cselect_b32 s15, 0, 2
    s_cmp_eq_u32 s14, s59
    s_cselect_b32 s15, 1, s15
    s_cmp_eq_u32 s15, 2
    s_cbranch_scc1 L_nocand
    s_lshl_b32 s14, {sQ}, 1
    s_add_u32 s14, s14, s15
    s_lshl_b32 s14, s14, 11
    s_add_u32 s14, s14, {WS_ROWH}
    v_lshl_add_u32 v13, v{vL}, 4, s14
    v_add_u32 v14, {WS_ROWX - WS_ROWH}, v13
    v_mov_b32 v32, v{H2P}
    v_mov_b32 v33, v{H2P+1}
    v_mov_b32 v34, {sNONCE}
    v_mov_b32 v35, {sNONCE}
    v_mov_b32 v36, v{H2P+2}
    v_mov_b32 v37, v{H2P+3}
    v_mov_b32 v38, {sNONCE}
    v_mov_b32 v39, {sNONCE}
    global_store_dwordx4 v13, v[32:35], {sWS} sc1
    global_store_dwordx4 v13, v[36:39], {sWS} offset:1024 sc1
    v_mov_b32 v40, v{X1P}
    v_mov_b32 v41, v{X1P+1}
    v_mov_b32 v42, {sNONCE}
    v_mov_b32 v43, {sNONCE}
    v_mov_b32 v44, v{X1P+2}
    v_mov_b32 v45, v{X1P+3}
    v_mov_b32 v46, {sNONCE}
    v_mov_b32 v47, {sNONCE}
    global_store_dwordx4 v14, v[40:43], {sWS} sc1
    global_store_dwordx4 v14, v[44:47], {sWS} offset:1024 sc1
    """)
    a.label('L_nocand')
    a(f"""
    s_cmp_eq_u32 {sW}, 7
    s_cbranch_scc0 L_nokey
    v_cmp_gt_u32 vcc, 4, v{vL}
    s_and_saveexec_b64 s[54:55], vcc
    s_lshl_b32 s14, {sQ}, 6
    s_add_u32 s14, s14, {WS_KEY}
    v_lshl_add_u32 v13, v{vL}, 4, s14
    v_mov_b32 v32, s58
    v_mov_b32 v33, s59
    v_mov_b32 v34, {sNONCE}
    v_mov_b32 v35, {sNONCE}
    global_store_dwordx4 v13, v[32:35], {sWS} sc1
    s_mov_b64 exec, s[54:55]
    """)
    a.label('L_nokey')
    stamp(11)
    for k in range(4):
        a(f'v_lshlrev_b32 v{DD+2*k}, 16, v{H2P+k}')
        a(f'v_and_b32 v{DD+2*k+1}, 0xffff0000, v{H2P+k}')
        a(f'v_lshlrev_b32 v{X1+2*k}, 16, v{X1P+k}')
        a(f'v_and_b32 v{X1+2*k+1}, 0xffff0000, v{X1P+k}')
    for k in range(8):
        a(f'v_mul_f32 v{DD+k}, v{DD+k}, v{GB+k}')
    for k in range(0, 8, 2):
        a(f'v_cvt_pk_bf16_f32 v27, v{DD+k}, v{DD+k+1}')
        a(f'v_lshlrev_b32 v{DD+k}, 16, v27')
        a(f'v_and_b32 v{DD+k+1}, 0xffff0000, v27')
    for k in range(8):
        a(f'v_add_f32 v{DD+k}, v{DD+k}, v{X1+k}')
    for k in range(4):
        a(f'v_cvt_pk_bf16_f32 v{OUTP+k}, v{DD+2*k}, v{DD+2*k+1}')
    if stop == 'p3':
        a(f"""
        s_lshl_b32 s14, {sQ}, 3
        s_add_u32 s14, s14, {sW}
        s_lshl_b32 s14, s14, 10
        v_lshl_add_u32 v2, v{vL}, 4, s14
        global_store_dwordx4 v2, v[{OUTP}:{OUTP+3}], {sOUT}
        s_waitcnt vmcnt(0)
        """)
        finish()
        a('s_branch L_end')


    L_A  = L_RED
    L_A2 = L_RED + 2048
    A2ROW = 2768
    L_PART = L_RED + 8192
    L_GUO = L_RED + 10240 + 64
    a(f"""
    s_cmp_lt_u32 {sQ}, 86
    s_cbranch_scc0 L_notgu
    s_cmp_eq_u32 {sW}, 0
    s_cbranch_scc0 L_t2wait
    v_lshlrev_b32 v2, 6, v{vL}
    v_add_u32 v2, {WS_KEY + 4096}, v2
    v_add_u32 v3, 8192, v2
    s_mov_b32 s14, 0
    """)
    a.label('L_e3poll')
    a(f"""
    global_load_dwordx4 v[32:35], v2, {sWS} offset:-4096 sc1
    global_load_dwordx4 v[36:39], v2, {sWS} sc1
    global_load_dwordx4 v[40:43], v3, {sWS} offset:-4096 sc1
    global_load_dwordx4 v[44:47], v3, {sWS} sc1
    s_add_u32 s14, s14, 1
    s_waitcnt vmcnt(0)
    v_xor_b32 v13, {sNONCE}, v34
    v_xor_b32 v14, {sNONCE}, v38
    v_xor_b32 v27, {sNONCE}, v42
    v_xor_b32 v28, {sNONCE}, v46
    v_or3_b32 v13, v13, v14, v27
    v_or_b32 v13, v13, v28
    v_cmp_ne_u32 vcc, 0, v13
    s_cmp_ge_u32 s14, 0x40000
    s_cbranch_scc1 L_e3got
    s_cbranch_vccnz L_e3poll
    """)
    a.label('L_e3got')
    def merge(a1, a2):
        a(f'v_min_u32 v13, v32, v{a1}')
        a(f'v_max_u32 v32, v32, v{a1}')
        a(f'v_max3_u32 v33, v13, v33, v{a2}')
    merge(36, 37); merge(40, 41); merge(44, 45)
    for step in ('row_shr:1 row_mask:0xf bank_mask:0xf bound_ctrl:0', 'row_shr:2 row_mask:0xf bank_mask:0xf bound_ctrl:0',
                 'row_shr:4 row_mask:0xf bank_mask:0xf bound_ctrl:0', 'row_shr:8 row_mask:0xf bank_mask:0xf bound_ctrl:0',
                 'row_bcast:15 row_mask:0xa bank_mask:0xf', 'row_bcast:31 row_mask:0xc bank_mask:0xf'):
        if 'bcast' in step:
            a('v_mov_b32 v36, 0\nv_mov_b32 v37, 0')
        a(f'v_mov_b32_dpp v36, v32 {step}')
        a(f'v_mov_b32_dpp v37, v33 {step}')
        merge(36, 37)
    a(f"""
    v_readlane_b32 s58, v32, 63
    v_readlane_b32 s59, v33, 63
    v_mov_b32 v2, {L_WINL}
    v_mov_b32 v32, s58
    v_mov_b32 v33, s59
    ds_write_b64 v2, v[32:33]
    s_cmp_eq_u32 {sQ}, 0
    s_cbranch_scc0 L_t2wait
    v_cmp_gt_u32 vcc, 4, v{vL}
    s_and_saveexec_b64 s[54:55], vcc
    v_lshlrev_b32 v13, 4, v{vL}
    v_add_u32 v13, {WS_WIN}, v13
    v_mov_b32 v34, {sNONCE}
    v_mov_b32 v35, {sNONCE}
    global_store_dwordx4 v13, v[32:35], {sWS} sc1
    s_mov_b64 exec, s[54:55]
    """)
    a.label('L_t2wait')
    a(f"""
    s_waitcnt lgkmcnt(0)
    s_barrier
    v_mov_b32 v2, {L_WINL}
    ds_read_b64 v[32:33], v2
    s_waitcnt lgkmcnt(0)
    v_readfirstlane_b32 s58, v32
    v_readfirstlane_b32 s59, v33
    """)
    stamp(12)
    def winners():
        a(f"""
        s_and_b32 s50, s58, 0xffff
        s_sub_u32 s50, 0xffff, s50
        s_and_b32 s51, s59, 0xffff
        s_sub_u32 s51, 0xffff, s51
        s_lshr_b32 s52, s50, 3
        s_lshr_b32 s53, s51, 3
        s_cmp_eq_u32 s52, s53
        s_cselect_b32 s14, 1, 0
        s_lshl_b32 s52, s52, 12
        s_lshl_b32 s53, s53, 1
        s_add_u32 s53, s53, s14
        s_lshl_b32 s53, s53, 11
        """)
    winners()
    a(f"""
    s_cmp_ge_u32 {sW}, 4
    s_cbranch_scc1 L_rowdone
    s_cmp_ge_u32 {sW}, 2
    s_cselect_b32 s14, s53, s52
    s_cselect_b32 s15, 1024, 0
    s_add_u32 s14, s14, {WS_ROWH}
    v_and_b32 v13, 127, v0
    v_lshl_add_u32 v2, v13, 4, s14
    v_and_b32 v14, 63, v13
    v_lshlrev_b32 v14, 4, v14
    v_lshrrev_b32 v13, 6, v13
    v_lshl_add_u32 v14, v13, 3, v14
    s_add_u32 s15, s15, {L_A}
    v_add_u32 v14, s15, v14
    s_mov_b32 s14, 0
    """)
    a.label('L_rowpoll')
    a(f"""
    global_load_dwordx4 v[32:35], v2, {sWS} sc1
    s_add_u32 s14, s14, 1
    s_waitcnt vmcnt(0)
    v_cmp_ne_u32 vcc, {sNONCE}, v34
    s_cmp_ge_u32 s14, 0x40000
    s_cbranch_scc1 L_rowgot
    s_cbranch_vccnz L_rowpoll
    """)
    a.label('L_rowgot')
    a('ds_write_b64 v14, v[32:33]')
    a.label('L_rowdone')
    a('s_waitcnt vmcnt(0) lgkmcnt(0)\ns_barrier')
    stamp(13)
    def tr_lane_addr(dst):
        a(f"""
        v_lshrrev_b32 v3, 4, v{vL}
        v_bfe_u32 v{dst}, v{vL}, 2, 2
        v_lshl_add_u32 v{dst}, v3, 2, v{dst}
        v_lshlrev_b32 v{dst}, 5, v{dst}
        v_and_b32 v13, 3, v{vL}
        v_lshl_add_u32 v{dst}, v13, 3, v{dst}
        """)
    tr_lane_addr(2)
    a(f"""
    s_lshl_b32 s14, {sW}, 11
    s_add_u32 s14, s14, {L_W}
    v_add_u32 v2, s14, v2
    v_and_b32 v13, 1, v{vL}
    v_lshlrev_b32 v13, 10, v13
    v_lshl_add_u32 v13, v3, 3, v13
    s_lshl_b32 s14, {sW}, 7
    s_add_u32 s14, s14, {L_A}
    v_add_u32 v13, s14, v13
    """)
    for kk in range(2):
        a(f'ds_read_b64 v[{32+4*kk}:{33+4*kk}], v13 offset:{64*kk}')
        a(f'ds_read_b64 v[{34+4*kk}:{35+4*kk}], v13 offset:{64*kk+32}')
        for m in range(2):
            a(f'ds_read_b64_tr_b16 v[{40+16*m+4*kk}:{41+16*m+4*kk}], v2 offset:{16384*m + 1024*kk}')
            a(f'ds_read_b64_tr_b16 v[{42+16*m+4*kk}:{43+16*m+4*kk}], v2 offset:{16384*m + 1024*kk + 512}')
    a('s_waitcnt lgkmcnt(0)')
    for kk in range(2):
        for m in range(2):
            c = f'v[{72+4*m}:{75+4*m}]'
            a(f'v_mfma_f32_16x16x32_bf16 {c}, v[{32+4*kk}:{35+4*kk}], v[{40+16*m+4*kk}:{43+16*m+4*kk}], {"0" if kk == 0 else c}')
    a(f"""
    s_lshl_b32 s14, {sW}, 8
    s_add_u32 s14, s14, {L_PART}
    v_lshl_add_u32 v2, v{vL}, 2, s14
    v_cmp_gt_u32 vcc, 16, v{vL}
    s_and_saveexec_b64 s[54:55], vcc
    ds_write_b32 v2, v72
    ds_write_b32 v2, v73 offset:64
    ds_write_b32 v2, v76 offset:128
    ds_write_b32 v2, v77 offset:192
    s_mov_b64 exec, s[54:55]
    s_waitcnt lgkmcnt(0)
    s_barrier
    s_cmp_eq_u32 {sW}, 0
    s_cbranch_scc0 L_gudone
    v_and_b32 v2, 31, v{vL}
    v_lshlrev_b32 v2, 2, v2
    v_add_u32 v2, {L_PART}, v2
    """)
    for w in range(8):
        a(f'ds_read_b32 v{32+w}, v2 offset:{256*w}')
        a(f'ds_read_b32 v{40+w}, v2 offset:{256*w+128}')
    a('s_waitcnt lgkmcnt(0)')
    for w in range(1, 8):
        a(f'v_add_f32 v32, v32, v{32+w}')
        a(f'v_add_f32 v40, v40, v{40+w}')
    rbf(a, 32, 32); rbf(a, 40, 40)
    a(f"""
    v_mul_f32 v2, {H(-LOG2E)}, v32
    v_exp_f32 v2, v2
    v_add_f32 v2, 1.0, v2
    v_rcp_f32 v2, v2
    v_mul_f32 v2, v2, v32
    """)
    rbf(a, 2, 2)
    a(f"""
    v_mul_f32 v2, v2, v40
    v_cvt_pk_bf16_f32 v2, v2, v2
    v_and_b32 v3, 31, v{vL}
    v_lshlrev_b32 v3, 1, v3
    v_add_u32 v3, {L_GUO}, v3
    ds_write_b16 v3, v2
    v_lshlrev_b32 v13, 3, v{vL}
    v_add_u32 v13, {L_GUO}, v13
    s_waitcnt lgkmcnt(0)
    v_cmp_gt_u32 vcc, 8, v{vL}
    s_and_saveexec_b64 s[54:55], vcc
    ds_read_b64 v[32:33], v13
    s_lshl_b32 s14, {sQ}, 7
    s_add_u32 s14, s14, {WS_GU}
    v_lshl_add_u32 v13, v{vL}, 4, s14
    v_mov_b32 v34, {sNONCE}
    v_mov_b32 v35, {sNONCE}
    s_waitcnt lgkmcnt(0)
    global_store_dwordx4 v13, v[32:35], {sWS} sc1
    s_mov_b64 exec, s[54:55]
    """)
    a.label('L_gudone')
    stamp(14)
    a('s_branch L_outrows')
    a.label('L_notgu')
    a(f"""
    v_mov_b32 v2, {WS_WIN}
    s_mov_b32 s14, 0
    """)
    a.label('L_winpoll')
    a(f"""
    global_load_dwordx4 v[32:35], v2, {sWS} sc1
    s_add_u32 s14, s14, 1
    s_waitcnt vmcnt(0)
    v_readfirstlane_b32 s15, v34
    s_cmp_eq_u32 s15, {sNONCE}
    s_cbranch_scc1 L_wingot
    s_cmp_ge_u32 s14, 0x40000
    s_cbranch_scc1 L_wingot
    s_sleep 4
    s_branch L_winpoll
    """)
    a.label('L_wingot')
    a(f"""
    v_readfirstlane_b32 s58, v32
    v_readfirstlane_b32 s59, v33
    """)
    winners()
    stamp(12)
    a.label('L_outrows')
    a(f"""
    s_lshl_b32 s14, {sQ}, 3
    s_add_u32 s14, s14, {sW}
    s_cmp_eq_u32 s14, s50
    s_cbranch_scc1 L_skipout
    s_cmp_eq_u32 s14, s51
    s_cbranch_scc1 L_skipout
    s_lshl_b32 s14, s14, 10
    v_lshl_add_u32 v2, v{vL}, 4, s14
    global_store_dwordx4 v2, v[{OUTP}:{OUTP+3}], {sOUT}
    """)
    a.label('L_skipout')
    a(f"""
    s_sub_u32 s15, {sQ}, 96
    s_cmp_lt_u32 s15, 32
    s_cbranch_scc0 L_fin
    s_lshl_b32 s56, s15, 4
    v_and_b32 v13, 15, v{vL}
    v_bfe_u32 v14, v{vL}, 4, 1
    v_add_u32 v13, s56, v13
    v_cmp_eq_u32 vcc, 1, v14
    v_mov_b32 v27, s52
    v_mov_b32 v28, s53
    v_cndmask_b32 v27, v27, v28, vcc
    v_lshrrev_b32 v28, 3, v13
    v_bfe_u32 v29, v13, 2, 1
    v_lshlrev_b32 v29, 10, v29
    v_lshl_add_u32 v28, v28, 4, v29
    v_add_u32 v27, v27, v28
    v_mov_b32 v55, v13
    """)
    a(f"""
    v_add_u32 v27, {WS_ROWH}, v27
    v_add_u32 v28, {WS_ROWX - WS_ROWH}, v27
    v_lshrrev_b32 v29, 1, v13
    v_lshlrev_b32 v29, 3, v29
    v_add_u32 v29, {WS_MOD + 5*2048}, v29
    v_lshlrev_b32 v2, 4, v0
    v_add_u32 v2, {WS_GU}, v2
    v_add_u32 v3, 8192, v2
    v_cmp_gt_u32 vcc, 176, v0
    s_mov_b64 s[54:55], vcc
    v_bfe_u32 v30, v0, 2, 1
    v_mul_u32_u24 v30, {A2ROW}, v30
    v_lshrrev_b32 v31, 3, v0
    v_lshl_add_u32 v30, v31, 5, v30
    v_and_b32 v31, 3, v0
    v_lshl_add_u32 v30, v31, 3, v30
    v_add_u32 v30, {L_A2}, v30
    s_mov_b32 s14, 0
    """)
    a.label('L_e4poll')
    a(f"""
    global_load_dwordx4 v[32:35], v2, {sWS} sc1
    v_mov_b32 v38, {sNONCE}
    s_mov_b64 s[6:7], exec
    s_and_b64 exec, exec, s[54:55]
    global_load_dwordx4 v[36:39], v3, {sWS} sc1
    s_mov_b64 exec, s[6:7]
    global_load_dwordx4 v[40:43], v27, {sWS} sc1
    global_load_dwordx4 v[44:47], v28, {sWS} sc1
    global_load_dwordx2 v[48:49], v29, {sWS} sc1
    s_add_u32 s14, s14, 1
    s_waitcnt vmcnt(0)
    v_xor_b32 v50, {sNONCE}, v34
    v_xor_b32 v51, {sNONCE}, v38
    v_xor_b32 v52, {sNONCE}, v42
    v_xor_b32 v53, {sNONCE}, v46
    v_xor_b32 v54, {sNONCE}, v49
    v_or3_b32 v50, v50, v51, v52
    v_or3_b32 v50, v50, v53, v54
    v_cmp_ne_u32 vcc, 0, v50
    s_cmp_ge_u32 s14, 0x40000
    s_cbranch_scc1 L_e4got
    s_cbranch_vccnz L_e4poll
    """)
    a.label('L_e4got')
    stamp(13)
    a(f"""
    ds_write_b64 v30, v[32:33]
    s_mov_b64 s[6:7], exec
    s_and_b64 exec, exec, s[54:55]
    ds_write_b64 v30, v[36:37] offset:2048
    s_mov_b64 exec, s[6:7]
    """)
    tr_lane_addr(2)
    a(f"""
    s_lshl_b32 s14, {sW}, 10
    s_add_u32 s14, s14, {L_W}
    v_add_u32 v2, s14, v2
    v_and_b32 v31, 1, v{vL}
    v_mul_u32_u24 v31, {A2ROW}, v31
    v_lshl_add_u32 v31, v3, 3, v31
    s_lshl_b32 s14, {sW}, 6
    s_add_u32 s14, s14, {L_A2}
    v_add_u32 v31, s14, v31
    s_waitcnt lgkmcnt(0)
    s_barrier
    """)
    for i in range(5):
        a(f'ds_read_b64 v[{64+4*i}:{65+4*i}], v31 offset:{512*i}')
        a(f'ds_read_b64 v[{66+4*i}:{67+4*i}], v31 offset:{512*i+32}')
        a(f'ds_read_b64_tr_b16 v[{96+4*i}:{97+4*i}], v2 offset:{8192*i}')
        a(f'ds_read_b64_tr_b16 v[{98+4*i}:{99+4*i}], v2 offset:{8192*i+512}')
        if i == 2: pass
    a('s_waitcnt lgkmcnt(0)')
    for i in range(5):
        a(f'v_mfma_f32_16x16x32_bf16 v[72+20:75+20], v[{64+4*i}:{67+4*i}], v[{96+4*i}:{99+4*i}], {"0" if i == 0 else "v[92:95]"}'.replace('v[72+20:75+20]', 'v[92:95]'))
    a(f"""
    s_cmp_lt_u32 {sW}, 3
    s_cbranch_scc0 L_dn5
    ds_read_b64 v[64:65], v31 offset:{512*5}
    ds_read_b64 v[66:67], v31 offset:{512*5+32}
    ds_read_b64_tr_b16 v[96:97], v2 offset:{8192*5}
    ds_read_b64_tr_b16 v[98:99], v2 offset:{8192*5+512}
    s_waitcnt lgkmcnt(0)
    v_mfma_f32_16x16x32_bf16 v[92:95], v[64:67], v[96:99], v[92:95]
    """)
    a.label('L_dn5')
    a(f"""
    s_lshl_b32 s14, {sW}, 7
    s_add_u32 s14, s14, {L_PART}
    v_lshl_add_u32 v2, v{vL}, 2, s14
    v_cmp_gt_u32 vcc, 16, v{vL}
    s_and_saveexec_b64 s[54:55], vcc
    s_nop 7
    ds_write_b32 v2, v92
    ds_write_b32 v2, v93 offset:64
    s_mov_b64 exec, s[54:55]
    s_waitcnt lgkmcnt(0)
    s_barrier
    s_cmp_eq_u32 {sW}, 0
    s_cbranch_scc0 L_fin
    v_and_b32 v2, 31, v{vL}
    v_lshlrev_b32 v2, 2, v2
    v_add_u32 v2, {L_PART}, v2
    """)
    for w in range(8):
        a(f'ds_read_b32 v{64+w}, v2 offset:{128*w}')
    a(f"""
    v_mov_b32 v13, v55
    v_and_b32 v3, 3, v13
    v_cmp_le_u32 vcc, 2, v3
    v_cndmask_b32 v40, v40, v41, vcc
    v_cndmask_b32 v44, v44, v45, vcc
    v_and_b32 v3, 1, v13
    v_cmp_eq_u32 vcc, 1, v3
    v_lshlrev_b32 v50, 16, v40
    v_and_b32 v40, 0xffff0000, v40
    v_cndmask_b32 v40, v50, v40, vcc
    v_lshlrev_b32 v50, 16, v44
    v_and_b32 v44, 0xffff0000, v44
    v_cndmask_b32 v44, v50, v44, vcc
    v_lshlrev_b32 v50, 16, v48
    v_and_b32 v48, 0xffff0000, v48
    v_cndmask_b32 v48, v50, v48, vcc
    v_bfe_u32 v14, v{vL}, 4, 1
    v_cmp_eq_u32 vcc, 1, v14
    v_mov_b32 v50, s58
    v_mov_b32 v51, s59
    v_cndmask_b32 v50, v50, v51, vcc
    v_lshrrev_b32 v50, 16, v50
    v_xor_b32 v51, 0x8000, v50
    v_xor_b32 v52, 0xffff, v50
    s_mov_b32 s14, 0x8000
    v_cmp_le_u32 s[6:7], s14, v50
    v_cndmask_b32 v50, v52, v51, s[6:7]
    v_lshlrev_b32 v50, 16, v50
    v_mul_f32 v50, {H(-LOG2E)}, v50
    v_exp_f32 v50, v50
    v_add_f32 v50, 1.0, v50
    v_rcp_f32 v50, v50
    v_mov_b32 v51, s50
    v_mov_b32 v52, s51
    v_cndmask_b32 v51, v51, v52, vcc
    v_lshlrev_b32 v51, 10, v51
    v_lshl_add_u32 v51, v13, 1, v51
    """)
    rbf(a, 50, 50)
    a('s_waitcnt lgkmcnt(0)')
    for w in range(1, 8):
        a(f'v_add_f32 v64, v64, v{64+w}')
    rbf(a, 64, 64)
    a('v_mul_f32 v64, v64, v50')
    rbf(a, 64, 64)
    a('v_add_f32 v64, v64, v40')
    rbf(a, 64, 64)
    a('v_mul_f32 v64, v64, v48')
    rbf(a, 64, 64)
    a(f"""
    v_add_f32 v64, v64, v44
    v_cvt_pk_bf16_f32 v64, v64, v64
    v_cmp_gt_u32 vcc, 32, v{vL}
    s_and_saveexec_b64 s[54:55], vcc
    global_store_short v51, v64, {sOUT}
    s_mov_b64 exec, s[54:55]
    """)
    a.label('L_fin')
    stamp(15)
    finish()

    a.label('L_end')
    a('s_endpgm')
    return a

HEADER = open('adaLN_cond__ssm_conv_s4d__moe_arch_mod__prompt.s.ref').read().split('; Override launch geometry')[0]

def emit(path, **kw):
    a = build(**kw)
    body = a.finalize()
    s = HEADER + f'; @launch grid=(256,1,1) block=(512,1,1) lds={LDS_SIZE}\n'
    s += f'.amdgcn_target "amdgcn-amd-amdhsa--gfx950"\n.text\n.globl {KN}\n.p2align 8\n.type {KN},@function\n{KN}:\n'
    s += body
    s += f'''.section .rodata,"a"
.p2align 6
.amdhsa_kernel {KN}
  .amdhsa_next_free_vgpr 256
  .amdhsa_next_free_sgpr 96
  .amdhsa_accum_offset 256
  .amdhsa_group_segment_fixed_size 0
  .amdhsa_kernarg_size 136
  .amdhsa_user_sgpr_count 2
  .amdhsa_user_sgpr_kernarg_segment_ptr 1
  .amdhsa_system_sgpr_workgroup_id_x 1
.end_amdhsa_kernel
'''
    open(path, 'w').write(s)
    return a

if __name__ == '__main__':
    import argparse
    ap = argparse.ArgumentParser()
    ap.add_argument('-o', default='adaLN_cond__ssm_conv_s4d__moe_arch_mod__prompt.s')
    ap.add_argument('--stop', default=None)
    ap.add_argument('--prof', action='store_true')
    args = ap.parse_args()
    a = emit(args.o, stop=args.stop, prof=args.prof)
    print('pads', a.pads, 'lines', len(a.lines))
```

```python
import sys
sys.path.insert(0, 'gen')
from asmlib import Asm

KN = 'adaLN_cond__ssm_conv_s4d__moe_arch_mod__prompt_kernel'

WS_N    = 0x000000
WS_Z    = 0x200000
WS_MOD  = 0x400000
WS_KEY  = 0x410000
WS_ROWH = 0x420000
WS_ROWX = 0x520000
WS_GU   = 0x620000
WS_WIN  = 0x630000
WS_DBG  = 0x800000

L_T    = 0
TROW   = 544
TCH    = 57 * TROW
CPY    = 4352
KCH    = 8 * CPY
L_U    = 69632
UCH    = 4608
L_ST   = 78848
STROW  = 1088
L_KC   = 87552
KCCH   = 1312
L_ZT   = 90176
L_RED  = 98368
L_W    = 114752
L_MISC = 158784
L_NONCE = L_MISC
L_SC    = L_MISC + 64
L_MP    = L_MISC + 1152
L_KEYS  = L_MISC + 1344
L_WINL  = L_MISC + 1408
LDS_SIZE = 160832
FCPY = [11, 0, 1, 4, 5, 7, 8, 11]

sX, sLAR, sAIM, sCRE, sCIM, sLDT, sDSK = 's[16:17]', 's[18:19]', 's[20:21]', 's[22:23]', 's[24:25]', 's[26:27]', 's[28:29]'
sWR, sWG, sWU, sWD, sCC, sWMOD, sOUT, sDBG, sWS = 's[32:33]', 's[34:35]', 's[36:37]', 's[38:39]', 's[40:41]', 's[42:43]', 's[44:45]', 's[46:47]', 's[48:49]'
sQ, sW, sNONCE = 's3', 's4', 's5'
sTAG = ['s8', 's9', 's10', 's11']
sLDTV, sDSKV = 's12', 's13'

LOG2E = 1.4426950408889634
INV2PI = 0.15915494309189535
import struct
def f2u(x): return struct.unpack('<I', struct.pack('<f', x))[0]
def H(x): return '0x%08x' % (f2u(x))

def cmul(a, d, x, y):
    a(f'v_pk_mul_f32 v[{d}:{d+1}], v[{x}:{x+1}], v[{y}:{y+1}] op_sel:[0,0] op_sel_hi:[1,0]')
    a(f'v_pk_fma_f32 v[{d}:{d+1}], v[{x}:{x+1}], v[{y}:{y+1}], v[{d}:{d+1}] op_sel:[1,1,0] op_sel_hi:[0,1,1] neg_lo:[1,0,0]')

def wave_sum(a, regs):
    for step in ('row_shr:1 row_mask:0xf bank_mask:0xf bound_ctrl:0', 'row_shr:2 row_mask:0xf bank_mask:0xf bound_ctrl:0',
                 'row_shr:4 row_mask:0xf bank_mask:0xf bound_ctrl:0', 'row_shr:8 row_mask:0xf bank_mask:0xf bound_ctrl:0',
                 'row_bcast:15 row_mask:0xa bank_mask:0xf', 'row_bcast:31 row_mask:0xc bank_mask:0xf'):
        for r in regs:
            a(f'v_add_f32_dpp v{r}, v{r}, v{r} {step}')

def rbf(a, d, s, tmp=None):
    a(f'v_cvt_pk_bf16_f32 v{d}, v{s}, v{s}')
    a(f'v_and_b32 v{d}, 0xffff0000, v{d}')

def build(stop=None, prof=False):
    a = Asm()
    nst = [0]
    def stamp(k):
        if prof: a(f's_memrealtime s[{60+2*k}:{61+2*k}]\ns_waitcnt lgkmcnt(0)')
        nst[0] = max(nst[0], k + 1)
    def finish():
        if not prof: return
        a('s_waitcnt lgkmcnt(0)')
        n = 16
        a(f"""
        v_mov_b32 v2, 0
        s_mul_i32 s14, s2, 8
        s_add_u32 s14, s14, {sW}
        s_lshl_b32 s14, s14, 6
        s_add_u32 s14, s14, {WS_DBG + 0x400000}
        v_mov_b32 v2, s14
        """)
        for k in range(0, n, 4):
            for j in range(4): a(f'v_mov_b32 v{8+j}, s{60+2*(k+j)}')
            a(f'global_store_dwordx4 v2, v[8:11], {sWS} offset:{4*k}')
            a('s_nop 1')
        if prof == 'dbg':
            a(f'''
            s_cmp_eq_u32 s2, 0
            s_cselect_b32 s14, {sW}, 1
            s_cmp_eq_u32 s14, 0
            s_cbranch_scc0 L_nodbg
            ''')
            for k in range(1, 16):
                a(f's_sub_u32 s14, s{60+2*k}, s60')
                a(f'v_mov_b32 v8, s14')
                a(f'v_mov_b32 v2, {4*k}')
                a(f'global_store_dword v2, v8, {sDBG}')
            a.label('L_nodbg')
        a('s_waitcnt vmcnt(0)')
    vT, vL = 0, 1
    vX = 4
    a(f'''
    s_cmp_ge_u32 s2, 256
    s_cbranch_scc1 L_end
    s_load_dwordx16 s[16:31], s[0:1], 0
    s_load_dwordx16 s[32:47], s[0:1], 64
    s_load_dwordx2 s[48:49], s[0:1], 128
    s_memrealtime s[6:7]
    ''')
    stamp(0)
    a(f'''
    v_and_b32 v{vL}, 63, v0
    v_lshrrev_b32 v2, 6, v0
    s_and_b32 s3, s2, 7
    s_lshl_b32 s3, s3, 5
    s_lshr_b32 s14, s2, 3
    s_add_u32 {sQ}, s3, s14
    v_readfirstlane_b32 {sW}, v2
    ''')
    a(f'''
    s_lshl_b32 s14, {sQ}, 3
    s_add_u32 s14, s14, {sW}
    s_lshl_b32 s14, s14, 10
    v_lshl_add_u32 v2, v{vL}, 4, s14
    v_lshlrev_b32 v3, 4, v0
    s_lshl_b32 s15, {sQ}, 13
    s_add_u32 s15, s15, {WS_Z}
    v_add_u32 v3, s15, v3
    v_mov_b32 v8, 0
    v_mov_b32 v9, 0
    v_mov_b32 v10, 0
    v_mov_b32 v11, 0
    ''')
    a(f'''
    s_lshr_b32 s50, {sW}, 2
    s_lshr_b32 s51, {sW}, 1
    s_and_b32 s51, s51, 1
    s_and_b32 s52, {sW}, 1
    s_lshl_b32 s14, {sQ}, 1
    s_add_u32 s14, s14, s50
    s_lshl_b32 s14, s14, 7
    s_lshl_b32 s15, s51, 6
    s_add_u32 s14, s14, s15
    v_add_lshl_u32 v12, v{vL}, s14, 1
    s_lshl_b32 s15, {sQ}, 2
    s_waitcnt lgkmcnt(0)
    global_load_dwordx4 v[{vX}:{vX+3}], v2, {sX}
    global_store_dwordx4 v3, v[8:11], {sWS} sc1
    global_load_ushort v16, v12, {sLAR}
    global_load_ushort v17, v12, {sAIM}
    global_load_ushort v18, v12, {sCRE}
    global_load_ushort v19, v12, {sCIM}
    s_load_dword {sLDTV}, {sLDT}, s15
    s_load_dword {sDSKV}, {sDSK}, s15
    ''')
    a(f'''
    s_cmp_eq_u32 s2, 0
    s_cselect_b32 s14, {sW}, 1
    s_cmp_eq_u32 s14, 0
    s_cbranch_scc0 L_non0
    s_mul_i32 s6, s6, 0x9E3779B1
    s_or_b32 s6, s6, 1
    v_mov_b32 v13, s6
    v_mov_b32 v14, 0
    global_store_dword v14, v13, {sDBG} sc1
    ''')
    a.label('L_non0')
    a(f'''
    v_mov_b32 v14, 0
    s_cmp_eq_u32 {sW}, 7
    s_cbranch_scc0 L_non1
    global_load_dword v15, v14, {sDBG} sc1
    ''')
    a.label('L_non1')
    a(f"""
    v_cmp_gt_u32 vcc, 64, v0
    s_and_saveexec_b64 s[54:55], vcc
    v_lshrrev_b32 v2, 5, v0
    v_mul_u32_u24 v2, {UCH}, v2
    v_and_b32 v3, 31, v0
    v_lshl_add_u32 v2, v3, 4, v2
    v_add_u32 v2, {L_U}, v2
    ds_write_b128 v2, v[8:11]
    s_mov_b64 exec, s[54:55]
    """)
    vStW, vStTr, vNst = 20, 21, 22
    a(f'''
    s_mul_i32 s14, {sW}, {STROW}
    s_add_u32 s14, s14, {L_ST}
    v_lshl_add_u32 v{vStW}, v{vL}, 4, s14
    v_bfe_u32 v2, v{vL}, 2, 2
    v_mul_u32_u24 v2, {STROW}, v2
    v_lshrrev_b32 v3, 4, v{vL}
    v_lshlrev_b32 v3, 5, v3
    v_and_b32 v13, 3, v{vL}
    v_lshl_add_u32 v3, v13, 3, v3
    s_lshl_b32 s14, {sW}, 7
    s_add_u32 s14, s14, {L_ST}
    v_add3_u32 v{vStTr}, v2, v3, s14
    v_lshrrev_b32 v2, 2, v0
    v_lshlrev_b32 v2, 14, v2
    v_and_b32 v3, 3, v0
    v_lshlrev_b32 v3, 4, v3
    s_lshl_b32 s14, {sQ}, 6
    s_add_u32 s14, s14, {WS_N}
    v_add3_u32 v{vNst}, v2, v3, s14
    s_waitcnt vmcnt(0) lgkmcnt(0)
    ''')
    a(f'''
    s_cmp_ge_u32 {sQ}, 192
    s_cbranch_scc1 L_nomodld
    v_lshrrev_b32 v2, 1, v0
    v_mul_u32_u24 v2, 6144, v2
    v_and_b32 v3, 1, v0
    v_lshlrev_b32 v3, 4, v3
    s_lshl_b32 s14, {sQ}, 5
    v_add3_u32 v2, v2, v3, s14
    v_add_u32 v3, {256 * 6144}, v2
    s_lshl_b32 s14, {sW}, 10
    s_add_u32 s14, s14, {L_W}
    s_mov_b32 m0, s14
    v_lshlrev_b32 v13, 1, v0
    global_load_lds_dwordx4 v2, {sWMOD}
    s_add_u32 s14, s14, 8192
    s_mov_b32 m0, s14
    s_nop 0
    global_load_lds_dwordx4 v3, {sWMOD}
    global_load_ushort v23, v13, {sCC}
    ''')
    a.label('L_nomodld')
    stamp(1)
    a(f'''
    v_mov_b32 v2, 0x3f803f80
    v_dot2_f32_bf16 v24, v{vX}, v2, 0
    v_dot2_f32_bf16 v24, v{vX+1}, v2, v24
    v_dot2_f32_bf16 v24, v{vX+2}, v2, v24
    v_dot2_f32_bf16 v24, v{vX+3}, v2, v24
    ''')
    for i in range(4):
        a(f'v_lshlrev_b32 v{32+2*i}, 16, v{vX+i}')
        a(f'v_and_b32 v{33+2*i}, 0xffff0000, v{vX+i}')
    wave_sum(a, [24])
    a(f'''
    v_readlane_b32 s14, v24, 63
    v_mov_b32 v25, {H(1/512)}
    v_mul_f32 v25, s14, v25
    ''')
    rbf(a, 26, 25)
    for i in range(8):
        a(f'v_sub_f32 v{32+i}, v{32+i}, v26')
    a('v_mul_f32 v24, v32, v32')
    for i in range(1, 8):
        a(f'v_fmac_f32 v24, v{32+i}, v{32+i}')
    wave_sum(a, [24])
    a(f'''
    v_sub_f32 v25, v25, v26
    v_readlane_b32 s14, v24, 63
    v_mul_f32 v25, v25, v25
    v_mov_b32 v27, {H(1/512)}
    v_fma_f32 v25, s14, v27, -v25
    v_max_f32 v25, 0, v25
    ''')
    rbf(a, 25, 25)
    a(f'v_add_f32 v25, {H(1e-5)}, v25')
    rbf(a, 25, 25)
    a('v_sqrt_f32 v25, v25')
    rbf(a, 25, 25)
    a('v_rcp_f32 v25, v25')
    for i in range(8):
        a(f'v_mul_f32 v{32+i}, v{32+i}, v25')
    for i in range(4):
        a(f'v_cvt_pk_f16_f32 v{40+i}, v{32+2*i}, v{33+2*i}')
    for i in range(4):
        a(f'v_add_u32 v{40+i}, 0x00040004, v{40+i}')
    for i in range(4):
        a(f'v_and_b32 v{40+i}, 0xfff8fff8, v{40+i}')
    a(f'ds_write_b128 v{vStW}, v[40:43]')
    a(f'''
    s_cmp_eq_u32 {sW}, 7
    s_cbranch_scc0 L_non2
    s_mov_b32 s14, 0
    ''')
    a.label('L_npoll')
    a(f'''
    v_readfirstlane_b32 s15, v15
    s_cmp_lg_u32 s15, 0
    s_cbranch_scc1 L_ngot
    s_add_u32 s14, s14, 1
    s_cmp_ge_u32 s14, 0x40000
    s_cbranch_scc1 L_ngot
    v_mov_b32 v14, 0
    global_load_dword v15, v14, {sDBG} sc1
    s_waitcnt vmcnt(0)
    s_branch L_npoll
    ''')
    a.label('L_ngot')
    a(f'''
    v_mov_b32 v2, {L_NONCE}
    v_mov_b32 v3, s15
    ds_write_b32 v2, v3
    ''')
    a.label('L_non2')
    a(f'''
    s_waitcnt lgkmcnt(0)
    s_barrier
    v_mov_b32 v2, {L_NONCE}
    ds_read_b32 v3, v2
    ds_read_b64_tr_b16 v[40:41], v{vStTr}
    ds_read_b64_tr_b16 v[42:43], v{vStTr} offset:{4*STROW}
    s_waitcnt lgkmcnt(2)
    v_readfirstlane_b32 {sNONCE}, v3
    ''')
    for k in range(4):
        if k: a(f's_lshr_b32 {sTAG[k]}, {sNONCE}, {3*k}')
        a(f's_and_b32 {sTAG[k]}, {sTAG[k] if k else sNONCE}, 0x00070007')
    a('s_waitcnt lgkmcnt(0)')
    for k in range(4):
        a(f'v_or_b32 v{40+k}, {sTAG[k]}, v{40+k}')
    a(f'global_store_dwordx4 v{vNst}, v[40:43], {sWS} sc1')
    stamp(2)
    if stop == 'ln1':
        a('s_waitcnt vmcnt(0)\ns_branch L_end')

    a(f'''
    s_lshl_b32 s14, s50, 4
    s_lshr_b32 s14, {sLDTV}, s14
    s_lshl_b32 s14, s14, 16
    v_mov_b32 v2, {H(LOG2E)}
    v_mul_f32 v24, s14, v2
    v_exp_f32 v24, v24
    v_lshlrev_b32 v16, 16, v16
    v_mul_f32 v16, v16, v2
    v_exp_f32 v16, v16
    ''')
    rbf(a, 24, 24)
    rbf(a, 16, 16)
    a(f'''
    v_lshlrev_b32 v17, 16, v17
    v_lshlrev_b32 v18, 16, v18
    v_lshlrev_b32 v19, 16, v19
    v_mul_f32 v16, v16, v24
    v_mul_f32 v17, v17, v24
    v_mul_f32 v16, {H(-LOG2E)}, v16
    v_mul_f32 v17, {H(INV2PI)}, v17
    v_add_f32 v24, v24, v24
    v_mul_f32 v26, v18, v24
    v_mul_f32 v27, v19, v24
    ''')
    def Edirect(d, p):
        a(f'''
        v_mul_f32 v2, {H(float(p))}, v16
        v_mul_f32 v3, {H(float(p))}, v17
        v_exp_f32 v2, v2
        v_fract_f32 v3, v3
        v_cos_f32 v{d}, v3
        v_sin_f32 v{d+1}, v3
        v_mul_f32 v{d}, v{d}, v2
        v_mul_f32 v{d+1}, v{d+1}, v2
        ''')
    vTW = 28
    a(f'''
    s_mul_i32 s14, s50, {TCH}
    s_lshl_b32 s15, s51, 8
    s_add_u32 s14, s14, s15
    s_add_u32 s14, s14, {L_T}
    v_lshl_add_u32 v{vTW}, v{vL}, 2, s14
    s_cmp_eq_u32 s52, 0
    s_cbranch_scc0 L_kg1
    ''')
    tmpc = [0]
    def put(reg, row, neg=False):
        t = 30 + (tmpc[0] & 1); tmpc[0] += 1
        a(f'v_cvt_pk_bf16_f32 v{t}, v{reg}, {"-" if neg else ""}v{reg+1}')
        a(f'ds_write_b32 v{vTW}, v{t} offset:{row*TROW}')
    W1, W8, W128 = 32, 34, 36
    Edirect(W1, 1); Edirect(W8, 8); Edirect(W128, 128)
    E = [None, W1] + [40 + 2*i for i in range(6)]
    a(f'v_mov_b32 v30, 0x00003f80')
    a(f'ds_write_b32 v{vTW}, v30 offset:0')
    put(W1, 1)
    for e in range(2, 8):
        cmul(a, E[e], E[e-1], W1); put(E[e], e)
    put(W128, 8)
    for e in range(1, 8):
        d = 52 + 2*(e & 1)
        cmul(a, d, W128, E[e]); put(d, 8 + e)
    put(26, 41, neg=True)
    prev = 26
    for b in range(1, 16):
        d = 56 + 2*(b & 1)
        cmul(a, d, prev, W8); put(d, 41 + b, neg=True); prev = d
    a('s_branch L_kg2')
    a.label('L_kg1')
    W2 = 32; W128 = 36
    Edirect(W2, 2); Edirect(W128, 128)
    E4, E6 = 38, 40
    cmul(a, E4, W2, W2); cmul(a, E6, E4, W2)
    W256, W384, W512 = 42, 44, 46
    cmul(a, W256, W128, W128); put(W256, 16)
    for e, r in ((1, W2), (2, E4), (3, E6)):
        d = 52 + 2*(e & 1); cmul(a, d, W256, r); put(d, 16 + e)
    cmul(a, W384, W256, W128); put(W384, 20)
    for e, r in ((1, W2), (2, E4), (3, E6)):
        d = 52 + 2*(e & 1); cmul(a, d, W384, r); put(d, 20 + e)
    cmul(a, W512, W256, W256); put(W512, 24)
    cmul(a, 52, W512, E4); put(52, 25)
    prev = W512
    for k, row in enumerate((26, 28, 30)):
        d = 48 + 2*(k & 1)
        cmul(a, d, prev, W128); put(d, row)
        cmul(a, 54, d, E4); put(54, row + 1)
        prev = d
    W1024 = 56
    cmul(a, W1024, W512, W512); put(W1024, 32)
    prev = W1024
    for k in range(1, 8):
        d = 48 + 2*(k & 1)
        cmul(a, d, prev, W128); put(d, 32 + k); prev = d
    cmul(a, 52, W1024, W1024); put(52, 40)
    a.label('L_kg2')
    a(f'''
    s_cmp_ge_u32 {sQ}, 192
    s_cbranch_scc1 L_nosc
    s_waitcnt vmcnt(1)
    v_lshlrev_b32 v23, 16, v23
    v_mul_f32 v2, {H(-LOG2E)}, v23
    v_exp_f32 v2, v2
    v_add_f32 v2, 1.0, v2
    v_rcp_f32 v2, v2
    v_mul_f32 v2, v2, v23
    v_cvt_pk_bf16_f32 v2, v2, v2
    v_lshlrev_b32 v3, 1, v0
    v_add_u32 v3, {L_SC}, v3
    ds_write_b16 v3, v2
    ''')
    a.label('L_nosc')
    a('s_waitcnt lgkmcnt(0)\ns_barrier')
    a(f'''
    s_cmp_ge_u32 {sW}, 6
    s_cbranch_scc1 L_modmm
    s_cmp_ge_u32 {sW}, 3
    s_cselect_b32 s14, 1, 0
    s_mul_i32 s15, s14, 3
    s_sub_u32 s15, {sW}, s15
    s_mul_i32 s53, s14, {TCH}
    v_and_b32 v2, 15, v{vL}
    v_lshrrev_b32 v3, 4, v{vL}
    v_mul_u32_u24 v13, {TROW}, v2
    v_lshl_add_u32 v13, v3, 4, v13
    s_mul_i32 s54, s15, {16*TROW}
    s_add_u32 s54, s54, s53
    s_add_u32 s54, s54, {L_T}
    v_add_u32 v14, s54, v13
    s_add_u32 s53, s53, {L_T + 41*TROW}
    v_add_u32 v13, s53, v13
    ''')
    for kk in range(8):
        a(f'ds_read_b128 v[{32+4*kk}:{35+4*kk}], v14 offset:{64*kk}')
        a(f'ds_read_b128 v[{64+4*kk}:{67+4*kk}], v13 offset:{64*kk}')
    a(f'''
    s_cmp_eq_u32 s15, 1
    s_cbranch_scc1 L_kt1
    s_cmp_eq_u32 s15, 2
    s_cbranch_scc1 L_kt2
    v_lshrrev_b32 v24, 1, v3
    v_lshlrev_b32 v24, 7, v24
    v_and_b32 v25, 1, v3
    v_lshl_add_u32 v24, v25, 2, v24
    v_lshl_add_u32 v24, v2, 3, v24
    v_add_u32 v25, 1, v24
    v_add_u32 v26, 2, v24
    v_add_u32 v27, 3, v24
    s_branch L_kt3
    ''')
    a.label('L_kt1')
    a(f'''
    v_lshlrev_b32 v24, 6, v3
    v_lshl_add_u32 v24, v2, 2, v24
    v_add_u32 v24, 256, v24
    v_add_u32 v25, 1, v24
    v_add_u32 v26, 2, v24
    v_add_u32 v27, 3, v24
    v_lshlrev_b32 v30, 6, v3
    v_lshl_add_u32 v30, v2, 1, v30
    v_add_u32 v30, {384 - 128}, v30
    v_cmp_le_u32 vcc, 2, v3
    v_add_u32 v31, 1, v30
    v_cndmask_b32 v24, v24, v30, vcc
    v_cndmask_b32 v25, v25, v31, vcc
    v_add_u32 v30, 32, v30
    v_add_u32 v31, 32, v31
    v_cndmask_b32 v26, v26, v30, vcc
    v_cndmask_b32 v27, v27, v31, vcc
    s_branch L_kt3
    ''')
    a.label('L_kt2')
    a(f'''
    v_lshl_add_u32 v24, v3, 6, v2
    v_add_u32 v24, 512, v24
    v_add_u32 v25, 16, v24
    v_add_u32 v26, 32, v24
    v_add_u32 v27, 48, v24
    v_mov_b32 v30, 648
    v_cmp_le_u32 vcc, 2, v3
    v_cndmask_b32 v24, v24, v30, vcc
    v_cndmask_b32 v25, v25, v30, vcc
    v_cndmask_b32 v26, v26, v30, vcc
    v_cndmask_b32 v27, v27, v30, vcc
    v_mov_b32 v30, 640
    v_cmp_eq_u32 vcc, 32, v{vL}
    v_cndmask_b32 v24, v24, v30, vcc
    ''')
    a.label('L_kt3')
    a(f'''
    s_mul_i32 s14, s14, {KCCH}
    s_add_u32 s14, s14, {L_KC}
    v_lshl_add_u32 v24, v24, 1, s14
    v_lshl_add_u32 v25, v25, 1, s14
    v_lshl_add_u32 v26, v26, 1, s14
    v_lshl_add_u32 v27, v27, 1, s14
    ''')
    for kk in range(8):
        a(f's_waitcnt lgkmcnt({14 - 2*kk})')
        a(f'v_mfma_f32_16x16x32_bf16 v[28:31], v[{32+4*kk}:{35+4*kk}], v[{64+4*kk}:{67+4*kk}], {"0" if kk == 0 else "v[28:31]"}')
    a(f'''
    v_cvt_pk_bf16_f32 v32, v28, v29
    v_cvt_pk_bf16_f32 v33, v30, v31
    ds_write_b16 v24, v32
    ds_write_b16_d16_hi v25, v32
    ds_write_b16 v26, v33
    ds_write_b16_d16_hi v27, v33
    s_branch L_mm_done
    ''')
    a.label('L_modmm')
    a(f'''
    s_cmp_ge_u32 {sQ}, 192
    s_cbranch_scc1 L_mm_done
    s_sub_u32 s14, {sW}, 6
    v_lshrrev_b32 v3, 4, v{vL}
    v_bfe_u32 v2, v{vL}, 2, 2
    v_lshl_add_u32 v2, v3, 2, v2
    v_lshlrev_b32 v2, 5, v2
    v_and_b32 v13, 3, v{vL}
    v_lshl_add_u32 v2, v13, 3, v2
    s_lshl_b32 s15, s14, 13
    s_add_u32 s15, s15, {L_W}
    v_add_u32 v13, s15, v2
    s_lshl_b32 s15, s14, 9
    s_add_u32 s15, s15, {L_SC}
    v_lshl_add_u32 v14, v3, 3, s15
    ''')
    for kk in range(8):
        a(f'ds_read_b64_tr_b16 v[{32+4*kk}:{33+4*kk}], v13 offset:{1024*kk}')
        a(f'ds_read_b64_tr_b16 v[{34+4*kk}:{35+4*kk}], v13 offset:{1024*kk+512}')
        a(f'ds_read_b64 v[{64+4*kk}:{65+4*kk}], v14 offset:{64*kk}')
        a(f'ds_read_b64 v[{66+4*kk}:{67+4*kk}], v14 offset:{64*kk+32}')
        if kk == 2:
            pass
    a('s_waitcnt lgkmcnt(0)')
    for kk in range(8):
        a(f'v_mfma_f32_16x16x32_bf16 v[28:31], v[{64+4*kk}:{67+4*kk}], v[{32+4*kk}:{35+4*kk}], {"0" if kk == 0 else "v[28:31]"}')
    a(f'''
    s_lshl_b32 s14, s14, 6
    s_add_u32 s14, s14, {L_MP}
    v_lshl_add_u32 v2, v{vL}, 2, s14
    v_cmp_gt_u32 vcc, 16, v{vL}
    s_and_saveexec_b64 s[14:15], vcc
    ds_write_b32 v2, v28
    s_mov_b64 exec, s[14:15]
    ''')
    a.label('L_mm_done')
    a('s_waitcnt lgkmcnt(0)\ns_barrier')
    a(f'''
    s_cmp_eq_u32 {sW}, 6
    s_cselect_b32 s14, {sQ}, 255
    s_cmp_ge_u32 s14, 192
    s_cbranch_scc1 L_nomodpub
    v_cmp_gt_u32 vcc, 4, v{vL}
    s_and_saveexec_b64 s[54:55], vcc
    v_lshlrev_b32 v2, 4, v{vL}
    v_add_u32 v3, {L_MP}, v2
    ds_read_b128 v[32:35], v3
    ds_read_b128 v[36:39], v3 offset:64
    s_lshl_b32 s14, {sQ}, 6
    s_add_u32 s14, s14, {WS_MOD}
    v_add_u32 v2, s14, v2
    s_waitcnt lgkmcnt(0)
    v_add_f32 v32, v32, v36
    v_add_f32 v33, v33, v37
    v_add_f32 v34, v34, v38
    v_add_f32 v35, v35, v39
    v_cvt_pk_bf16_f32 v32, v32, v33
    v_cvt_pk_bf16_f32 v34, v34, v35
    v_mov_b32 v33, {sNONCE}
    v_mov_b32 v35, {sNONCE}
    global_store_dwordx4 v2, v[32:35], {sWS} sc1
    s_mov_b64 exec, s[54:55]
    ''')
    a.label('L_nomodpub')
    if stop == 'kc':
        a(f'''
        v_lshlrev_b32 v2, 3, v0
        v_cmp_gt_u32 vcc, {2*KCCH//8}, v0
        s_and_saveexec_b64 s[54:55], vcc
        v_add_u32 v3, {L_KC}, v2
        ds_read_b64 v[32:33], v3
        s_lshl_b32 s14, {sQ}, 12
        s_add_u32 s14, s14, {WS_DBG}
        v_add_u32 v2, s14, v2
        s_waitcnt lgkmcnt(0)
        global_store_dwordx2 v2, v[32:33], {sWS}
        s_mov_b64 exec, s[54:55]
        s_waitcnt vmcnt(0)
        s_branch L_end
        ''')

    stamp(3)
    a(f"""
    v_and_b32 v2, 255, v0
    v_lshrrev_b32 v3, 8, v0
    v_mul_u32_u24 v13, {KCCH}, v3
    v_add_u32 v13, {L_KC}, v13
    v_lshlrev_b32 v14, 3, v2
    v_cmp_gt_u32 vcc, 32, v2
    """)
    for i in range(0, 8, 2):
        a(f"""
        v_add_u32 v24, {i}, v14
        v_add_u32 v25, {i+1}, v14
        v_cvt_f32_u32 v26, v24
        v_cvt_f32_u32 v27, v25
        v_cvt_pk_bf16_f32 v26, v26, v27
        v_lshrrev_b32 v27, 16, v26
        v_and_b32 v26, 0xffff, v26
        v_subrev_u32 v26, 0x4280, v26
        v_subrev_u32 v27, 0x4280, v27
        v_cndmask_b32 v26, v26, v24, vcc
        v_cndmask_b32 v27, v27, v25, vcc
        v_lshl_add_u32 v26, v26, 1, v13
        v_lshl_add_u32 v27, v27, 1, v13
        ds_read_u16 v{40 + i}, v26
        ds_read_u16 v{41 + i}, v27
        """)
    a(f"""
    v_mul_u32_u24 v13, {KCH}, v3
    v_lshl_add_u32 v13, v2, 4, v13
    v_add_u32 v13, {L_T + 16*FCPY[0] + 32}, v13
    s_waitcnt lgkmcnt(0)
    v_lshl_or_b32 v32, v41, 16, v40
    v_lshl_or_b32 v33, v43, 16, v42
    v_lshl_or_b32 v34, v45, 16, v44
    v_lshl_or_b32 v35, v47, 16, v46
    ds_write_b128 v13, v[32:35]
    s_cmp_eq_u32 {sW}, 0
    s_cbranch_scc0 L_nozc
    v_cmp_gt_u32 vcc, 18, v{vL}
    s_and_saveexec_b64 s[54:55], vcc
    v_and_b32 v24, 7, v{vL}
    v_bfe_u32 v25, v{vL}, 3, 1
    v_lshlrev_b32 v26, 2, v24
    v_mov_b32 v27, 0xB875410B
    v_lshrrev_b32 v26, v26, v27
    v_and_b32 v26, 15, v26
    v_mul_u32_u24 v24, {CPY}, v24
    v_lshl_add_u32 v24, v26, 4, v24
    v_mul_u32_u24 v25, {KCH}, v25
    v_add_u32 v24, v24, v25
    v_and_b32 v25, 1, v{vL}
    v_mul_u32_u24 v25, {KCH}, v25
    v_add_u32 v25, {16*FCPY[0] + 16}, v25
    v_cmp_le_u32 vcc, 16, v{vL}
    v_cndmask_b32 v24, v24, v25, vcc
    v_add_u32 v24, {L_T}, v24
    v_mov_b32 v28, 0
    v_mov_b32 v29, 0
    v_mov_b32 v30, 0
    v_mov_b32 v31, 0
    ds_write_b128 v24, v[28:31]
    s_mov_b64 exec, s[54:55]
    """)
    a.label('L_nozc')
    a('s_waitcnt lgkmcnt(0)\ns_barrier')
    a(f"""
    v_subrev_u32 v14, 16, v13
    ds_read_b128 v[32:35], v14
    ds_read_b128 v[36:39], v13
    v_subrev_u32 v14, {16*FCPY[0]}, v14
    s_waitcnt lgkmcnt(0)
    """)
    for i in range(7):
        a(f'v_alignbit_b32 v{48+i}, v{33+i}, v{32+i}, 16')
    for i in range(1, 7):
        a(f'v_alignbit_b32 v{57+i}, v{33+i}, v{32+i}, 16')
        a(f'v_mov_b32 v{41+i}, v{32+i}')
    srcs = {1: 48, 2: 42, 3: 58, 4: 34, 5: 50, 6: 44, 7: 60}
    for sft in range(1, 8):
        a(f'ds_write_b128 v14, v[{srcs[sft]}:{srcs[sft]+3}] offset:{sft*CPY + 16*FCPY[sft]}')
    stamp(4)
    if stop == 'kx':
        a(f"""
        s_waitcnt lgkmcnt(0)
        s_barrier
        v_lshlrev_b32 v2, 4, v0
        s_mul_i32 s14, {sQ}, {2*KCH}
        s_add_u32 s14, s14, {WS_DBG}
        v_add_u32 v3, s14, v2
        s_mov_b32 s15, 0
        """)
        a.label('L_dumpkx')
        a(f"""
        ds_read_b128 v[32:35], v2
        s_waitcnt lgkmcnt(0)
        v_cmp_gt_u32 vcc, {2*KCH}, v2
        s_and_saveexec_b64 s[54:55], vcc
        global_store_dwordx4 v3, v[32:35], {sWS}
        s_mov_b64 exec, s[54:55]
        v_add_u32 v2, 8192, v2
        v_add_u32 v3, 8192, v3
        s_add_u32 s15, s15, 1
        s_cmp_lt_u32 s15, 9
        s_cbranch_scc1 L_dumpkx
        s_waitcnt vmcnt(0)
        s_branch L_end
        """)
    vG, vS = 24, 25
    a(f"""
    s_lshl_b32 s14, {sQ}, 3
    s_add_u32 s14, s14, {WS_MOD}
    v_mov_b32 v2, s14
    s_lshr_b32 s14, {sQ}, 1
    s_lshl_b32 s14, s14, 14
    s_and_b32 s15, {sQ}, 1
    s_lshl_b32 s15, s15, 5
    s_add_u32 s14, s14, s15
    s_add_u32 s14, s14, {WS_N}
    v_lshrrev_b32 v3, 1, v0
    v_lshlrev_b32 v13, 6, v3
    v_and_b32 v14, 1, v0
    v_lshl_add_u32 v13, v14, 4, v13
    v_add_u32 v13, s14, v13
    v_mul_u32_u24 v26, {UCH}, v14
    v_lshl_add_u32 v26, v3, 4, v26
    v_add_u32 v26, {L_U + 512}, v26
    s_mov_b32 s14, 0
    """)
    a.label('L_mpoll')
    a(f"""
    global_load_dwordx2 v[28:29], v2, {sWS} sc1
    global_load_dwordx2 v[30:31], v2, {sWS} offset:2048 sc1
    s_add_u32 s14, s14, 1
    s_waitcnt vmcnt(0)
    v_cmp_ne_u32 vcc, {sNONCE}, v29
    v_cmp_ne_u32 s[54:55], {sNONCE}, v31
    s_or_b64 vcc, vcc, s[54:55]
    s_cmp_ge_u32 s14, 0x40000
    s_cbranch_scc1 L_mgot
    s_cbranch_vccnz L_mpoll
    """)
    a.label('L_mgot')
    a(f"""
    v_cmp_eq_u32 vcc, 1, v14
    v_lshlrev_b32 v27, 16, v28
    v_and_b32 v28, 0xffff0000, v28
    v_cndmask_b32 v{vS}, v27, v28, vcc
    v_lshlrev_b32 v27, 16, v30
    v_and_b32 v30, 0xffff0000, v30
    v_cndmask_b32 v{vG}, v27, v30, vcc
    v_add_f32 v{vG}, 1.0, v{vG}
    """)
    rbf(a, vG, vG)
    stamp(5)
    a('s_mov_b32 s14, 0')
    a.label('L_e1poll')
    a(f"""
    global_load_dwordx4 v[32:35], v13, {sWS} sc1
    s_add_u32 s14, s14, 1
    s_waitcnt vmcnt(0)
    v_xor_b32 v36, {sTAG[0]}, v32
    v_xor_b32 v37, {sTAG[1]}, v33
    v_xor_b32 v38, {sTAG[2]}, v34
    v_xor_b32 v39, {sTAG[3]}, v35
    v_or3_b32 v36, v36, v37, v38
    v_or_b32 v36, v36, v39
    v_and_b32 v36, 0x00070007, v36
    v_cmp_ne_u32 vcc, 0, v36
    s_cmp_ge_u32 s14, 0x40000
    s_cbranch_scc1 L_e1got
    s_cbranch_vccnz L_e1poll
    """)
    a.label('L_e1got')
    stamp(6)
    for k in range(4):
        a(f'v_and_b32 v{32+k}, 0xfff8fff8, v{32+k}')
    for k in range(4):
        a(f'v_fma_mix_f32 v{40+2*k}, v{32+k}, v{vG}, v{vS} op_sel:[0,0,0] op_sel_hi:[1,0,0]')
        a(f'v_fma_mix_f32 v{41+2*k}, v{32+k}, v{vG}, v{vS} op_sel:[1,0,0] op_sel_hi:[1,0,0]')
    for k in range(4):
        a(f'v_cvt_pk_bf16_f32 v{32+k}, v{47-2*k}, v{46-2*k}')
    a(f'ds_write_b128 v26, v[32:35]')
    vA, vB = 2, 3
    a(f"""
    s_lshr_b32 s50, {sW}, 1
    s_and_b32 s50, s50, 1
    s_and_b32 s51, {sW}, 1
    v_and_b32 v13, 15, v{vL}
    v_add_u32 v14, 1, v13
    v_and_b32 v27, 7, v14
    v_lshrrev_b32 v14, 3, v14
    v_lshlrev_b32 v28, 2, v27
    v_mov_b32 v29, 0xB875410B
    v_lshrrev_b32 v28, v28, v29
    v_and_b32 v28, 15, v28
    v_add_u32 v28, v28, v14
    v_mul_u32_u24 v27, {CPY}, v27
    v_lshl_add_u32 v27, v28, 4, v27
    v_lshrrev_b32 v28, 5, v{vL}
    v_bfe_u32 v29, v{vL}, 4, 1
    v_lshlrev_b32 v30, 1, v28
    v_sub_u32 v30, v30, v29
    v_lshlrev_b32 v30, 4, v30
    s_mul_i32 s14, s50, {KCH}
    s_lshl_b32 s15, s51, 8
    s_add_u32 s14, s14, s15
    s_add_u32 s14, s14, {L_T + 32 - 16}
    v_add3_u32 v{vA}, v27, v30, s14
    v_sub_u32 v30, v13, v28
    v_lshlrev_b32 v30, 5, v30
    v_lshl_add_u32 v30, v29, 4, v30
    s_mul_i32 s14, s50, {UCH}
    s_add_u32 s14, s14, {L_U + 512 - 192}
    s_sub_u32 s14, s14, s15
    v_add_u32 v{vB}, s14, v30
    s_waitcnt lgkmcnt(0)
    s_barrier
    """)
    stamp(7)
    a(f"""
    s_cmp_ge_u32 {sW}, 4
    s_cbranch_scc1 L_wpref
    """)
    ACC = 64
    SETS = [(96, 128), (160, 192)]
    def loads(tau):
        A0, B0 = SETS[tau & 1]
        out = []
        for k in range(8):
            out.append(f'ds_read_b128 v[{B0+4*k}:{B0+4*k+3}], v{vB} offset:{512*k + 192 - 64*tau}')
            out.append(f'ds_read_b128 v[{A0+4*k}:{A0+4*k+3}], v{vA} offset:{512*k + 64*tau}')
        return out
    for l in loads(0): a(l)
    for tau in range(4):
        A0, B0 = SETS[tau & 1]
        nxt = loads(tau + 1) if tau < 3 else []
        pairs = [(i, d - i) for d in range(8) for i in range(d + 1)]
        first = set()
        waited = -1
        for n, (i, j) in enumerate(pairs):
            need_idx = 2 * max(i, j) + 1
            if tau == 0 and need_idx > waited:
                a(f's_waitcnt lgkmcnt({15 - need_idx})'); waited = need_idx
            if tau > 0 and n == 0:
                a('s_waitcnt lgkmcnt(0)')
            ct = i + j
            c = f'v[{ACC+4*ct}:{ACC+4*ct+3}]'
            src = '0' if (tau == 0 and ct not in first) else c
            first.add(ct)
            a(f'v_mfma_f32_16x16x32_bf16 {c}, v[{A0+4*j}:{A0+4*j+3}], v[{B0+4*i}:{B0+4*i+3}], {src}')
            if nxt and n >= 2 and n % 2 == 0:
                a(nxt.pop(0))
        assert not nxt
    a(f"""
    s_lshl_b32 s14, {sW}, 12
    s_add_u32 s14, s14, {L_RED}
    v_lshl_add_u32 v13, v{vL}, 4, s14
    s_cmp_eq_u32 s51, 0
    s_cbranch_scc0 L_red1
    """)
    for k in range(4):
        a(f'ds_write_b128 v13, v[{ACC+4*(2*k+1)}:{ACC+4*(2*k+1)+3}] offset:{1024*k}')
    a('s_branch L_red2')
    a.label('L_red1')
    for k in range(4):
        a(f'ds_write_b128 v13, v[{ACC+4*(2*k)}:{ACC+4*(2*k)+3}] offset:{1024*k}')
        a(f'v_mov_b32 v{ACC+8*k}, v{ACC+8*k+4}')
        a(f'v_mov_b32 v{ACC+8*k+1}, v{ACC+8*k+5}')
        a(f'v_mov_b32 v{ACC+8*k+2}, v{ACC+8*k+6}')
        a(f'v_mov_b32 v{ACC+8*k+3}, v{ACC+8*k+7}')
    a.label('L_red2')
    a('s_branch L_convdone')
    a.label('L_wpref')
    a(f"""
    s_sub_u32 s14, {sW}, 4
    s_cmp_lt_u32 {sQ}, 86
    s_cbranch_scc0 L_wp_down
    v_lshrrev_b32 v13, 1, v{vL}
    s_lshl_b32 s15, s14, 7
    v_add_u32 v13, s15, v13
    v_mul_u32_u24 v13, 2752, v13
    v_and_b32 v14, 1, v{vL}
    v_lshl_add_u32 v13, v14, 4, v13
    s_lshl_b32 s15, {sQ}, 5
    v_add_u32 v13, s15, v13
    s_lshl_b32 s14, s14, 12
    s_add_u32 s14, s14, {L_W}
    """)
    for m, ptr in enumerate((sWG, sWU)):
        for i in range(4):
            a(f's_add_u32 s15, s14, {16384*m + 1024*i}')
            a('s_mov_b32 m0, s15')
            if i: a(f'v_add_u32 v14, {i*32*2752}, v13')
            else: a('v_mov_b32 v14, v13')
            a(f'global_load_lds_dwordx4 v14, {ptr}')
    a('s_branch L_convdone')
    a.label('L_wp_down')
    a(f"""
    s_sub_u32 s15, {sQ}, 96
    s_cmp_lt_u32 s15, 32
    s_cbranch_scc0 L_convdone
    v_lshrrev_b32 v13, 1, v{vL}
    s_lshl_b32 s54, s14, 5
    v_add_u32 v13, s54, v13
    v_lshlrev_b32 v13, 10, v13
    v_and_b32 v14, 1, v{vL}
    v_lshl_add_u32 v13, v14, 4, v13
    s_lshl_b32 s15, s15, 5
    v_add_u32 v13, s15, v13
    s_lshl_b32 s54, s14, 10
    s_add_u32 s54, s54, {L_W}
    """)
    for i in range(11):
        if i == 10:
            a('s_cmp_lt_u32 s14, 3\ns_cbranch_scc0 L_convdone')
        a(f's_add_u32 s15, s54, {4096*i}')
        a('s_mov_b32 m0, s15')
        a(f'v_add_u32 v14, {i*128*1024}, v13')
        a(f'global_load_lds_dwordx4 v14, {sWD}')
    a.label('L_convdone')
    a('s_waitcnt lgkmcnt(0)\ns_barrier')
    stamp(8)
    a(f"""
    s_cmp_ge_u32 {sW}, 4
    s_cbranch_scc1 L_epidone
    s_xor_b32 s14, {sW}, 1
    s_lshl_b32 s14, s14, 12
    s_add_u32 s14, s14, {L_RED}
    v_lshl_add_u32 v13, v{vL}, 4, s14
    v_and_b32 v14, 15, v{vL}
    v_lshrrev_b32 v27, 4, v{vL}
    v_lshlrev_b32 v14, 5, v14
    v_lshrrev_b32 v28, 1, v27
    v_lshl_add_u32 v28, v28, 4, v14
    v_and_b32 v29, 1, v27
    v_sub_u32 v29, 1, v29
    v_lshl_add_u32 v28, v29, 3, v28
    s_mul_i32 s14, s50, {UCH}
    s_lshl_b32 s15, s51, 9
    s_add_u32 s14, s14, s15
    s_add_u32 s14, s14, {L_U + 512}
    v_add_u32 v28, s14, v28
    v_lshl_add_u32 v29, v27, 3, v14
    s_lshl_b32 s14, s50, 12
    s_add_u32 s14, s14, s15
    s_add_u32 s14, s14, {L_ZT}
    v_add_u32 v29, s14, v29
    s_lshl_b32 s14, s50, 4
    s_lshr_b32 s14, {sDSKV}, s14
    s_lshl_b32 s14, s14, 16
    """)
    for k in range(4):
        a(f'ds_read_b128 v[{96+4*k}:{99+4*k}], v13 offset:{1024*k}')
        a(f'ds_read_b64 v[{112+2*k}:{113+2*k}], v28 offset:{1024*k}')
    for k in range(4):
        a(f's_waitcnt lgkmcnt({6-2*k})')
        c = ACC + 8*k
        for r in range(4):
            a(f'v_add_f32 v{c+r}, v{c+r}, v{96+4*k+r}')
        h0, h1 = 112 + 2*k, 113 + 2*k
        a(f"""
        v_and_b32 v120, 0xffff0000, v{h1}
        v_lshlrev_b32 v121, 16, v{h1}
        v_and_b32 v122, 0xffff0000, v{h0}
        v_lshlrev_b32 v123, 16, v{h0}
        """)
        for r in range(4):
            a(f'v_fmac_f32 v{c+r}, s14, v{120+r}')
        a(f"""
        v_cvt_pk_bf16_f32 v{124+2*(k&1)}, v{c}, v{c+1}
        v_cvt_pk_bf16_f32 v{125+2*(k&1)}, v{c+2}, v{c+3}
        ds_write_b64 v29, v[{124+2*(k&1)}:{125+2*(k&1)}] offset:{1024*k}
        """)
    a.label('L_epidone')
    a(f"""
    v_lshrrev_b32 v2, 2, v0
    v_bfe_u32 v3, v0, 1, 1
    v_and_b32 v13, 1, v0
    v_lshlrev_b32 v14, 12, v3
    v_lshl_add_u32 v14, v2, 5, v14
    v_lshl_add_u32 v14, v13, 4, v14
    v_add_u32 v14, {L_ZT}, v14
    v_lshlrev_b32 v2, 14, v2
    v_lshl_add_u32 v2, v3, 5, v2
    v_lshl_add_u32 v2, v13, 4, v2
    s_lshl_b32 s14, {sQ}, 6
    s_add_u32 s14, s14, {WS_Z}
    v_add_u32 v2, s14, v2
    s_waitcnt lgkmcnt(0)
    s_barrier
    ds_read_b128 v[32:35], v14
    s_waitcnt lgkmcnt(0)
    v_max_u32 v32, 1, v32
    v_max_u32 v33, 1, v33
    v_max_u32 v34, 1, v34
    v_max_u32 v35, 1, v35
    global_store_dwordx4 v2, v[32:35], {sWS} sc1
    """)
    stamp(9)
    if stop == 'z':
        a('s_waitcnt vmcnt(0)')
        finish()
        a('s_branch L_end')


    GA, SB, G2, GB, GW, XF = 96, 104, 112, 120, 128, 136
    a(f"""
    v_lshlrev_b32 v2, 5, v{vL}
    v_add_u32 v2, {WS_MOD + 2*2048}, v2
    v_add_u32 v13, 4096, v2
    v_lshlrev_b32 v3, 4, v{vL}
    global_load_dwordx4 v[64:67], v3, {sWR}
    s_mov_b32 s14, 0
    """)
    a.label('L_m3poll')
    for sec in range(4):
        base = 'v2' if sec < 2 else 'v13'
        off = (sec & 1) * 2048
        a(f'global_load_dwordx4 v[{32+8*sec}:{35+8*sec}], {base}, {sWS} offset:{off} sc1')
        a(f'global_load_dwordx4 v[{36+8*sec}:{39+8*sec}], {base}, {sWS} offset:{off+16} sc1')
    a(f"""
    s_add_u32 s14, s14, 1
    s_waitcnt vmcnt(0)
    v_mov_b32 v14, 0
    """)
    for g in range(16):
        a(f'v_xor_b32 v27, {sNONCE}, v{33+2*g}')
        a(f'v_or_b32 v14, v14, v27')
    a(f"""
    v_cmp_ne_u32 vcc, 0, v14
    s_cmp_ge_u32 s14, 0x40000
    s_cbranch_scc1 L_m3got
    s_cbranch_vccnz L_m3poll
    """)
    a.label('L_m3got')
    for sec, dst in ((0, GA), (1, SB), (2, G2), (3, GB)):
        for k in range(4):
            src = 32 + 8*sec + 2*k
            a(f'v_lshlrev_b32 v{dst+2*k}, 16, v{src}')
            a(f'v_and_b32 v{dst+2*k+1}, 0xffff0000, v{src}')
    for k in range(8):
        a(f'v_add_f32 v{G2+k}, 1.0, v{G2+k}')
    for k in range(0, 8, 2):
        a(f'v_cvt_pk_bf16_f32 v27, v{G2+k}, v{G2+k+1}')
        a(f'v_lshlrev_b32 v{G2+k}, 16, v27')
        a(f'v_and_b32 v{G2+k+1}, 0xffff0000, v27')
    for k in range(4):
        a(f'v_lshlrev_b32 v{GW+2*k}, 16, v{64+k}')
        a(f'v_and_b32 v{GW+2*k+1}, 0xffff0000, v{64+k}')
        a(f'v_lshlrev_b32 v{XF+2*k}, 16, v{vX+k}')
        a(f'v_and_b32 v{XF+2*k+1}, 0xffff0000, v{vX+k}')
    a(f'v_mul_f32 v27, v{SB}, v{GW}')
    for k in range(1, 8):
        a(f'v_fmac_f32 v27, v{SB+k}, v{GW+k}')
    for k in range(8):
        a(f'v_mul_f32 v{GW+k}, v{GW+k}, v{G2+k}')
    wave_sum(a, [27])
    a(f"""
    v_readlane_b32 s56, v27, 63
    s_lshr_b32 s14, {sQ}, 1
    s_lshl_b32 s14, s14, 14
    s_and_b32 s15, {sQ}, 1
    s_lshl_b32 s15, s15, 4
    s_add_u32 s14, s14, s15
    s_add_u32 s14, s14, {WS_Z}
    v_lshl_add_u32 v2, v0, 5, s14
    v_lshlrev_b32 v3, 1, v0
    v_add_u32 v3, {L_ST}, v3
    s_mov_b32 s14, 0
    """)
    a.label('L_e2poll')
    a(f"""
    global_load_dwordx4 v[32:35], v2, {sWS} sc1
    s_add_u32 s14, s14, 1
    s_waitcnt vmcnt(0)
    v_min3_u32 v36, v32, v33, v34
    v_min_u32 v36, v36, v35
    v_cmp_eq_u32 vcc, 0, v36
    s_cmp_ge_u32 s14, 0x40000
    s_cbranch_scc1 L_e2got
    s_cbranch_vccnz L_e2poll
    """)
    a.label('L_e2got')
    stamp(10)
    for k in range(4):
        a(f'ds_write_b16 v3, v{32+k} offset:{(2*k)*STROW}')
        a(f'ds_write_b16_d16_hi v3, v{32+k} offset:{(2*k+1)*STROW}')
    a(f"""
    s_waitcnt lgkmcnt(0)
    s_barrier
    ds_read_b128 v[32:35], v{vStW}
    s_waitcnt lgkmcnt(0)
    """)
    X1, X1P, DD, H2P, OUTP = 40, 48, 52, 60, 64
    for k in range(4):
        a(f'v_lshlrev_b32 v{X1+2*k}, 16, v{32+k}')
        a(f'v_and_b32 v{X1+2*k+1}, 0xffff0000, v{32+k}')
    for k in range(8):
        a(f'v_fma_f32 v{X1+k}, v{GA+k}, v{X1+k}, v{XF+k}')
    for k in range(4):
        a(f'v_cvt_pk_bf16_f32 v{X1P+k}, v{X1+2*k}, v{X1+2*k+1}')
    a(f"""
    v_mov_b32 v2, 0x3f803f80
    v_dot2_f32_bf16 v24, v{X1P}, v2, 0
    v_dot2_f32_bf16 v24, v{X1P+1}, v2, v24
    v_dot2_f32_bf16 v24, v{X1P+2}, v2, v24
    v_dot2_f32_bf16 v24, v{X1P+3}, v2, v24
    """)
    for k in range(4):
        a(f'v_lshlrev_b32 v{X1+2*k}, 16, v{X1P+k}')
        a(f'v_and_b32 v{X1+2*k+1}, 0xffff0000, v{X1P+k}')
    wave_sum(a, [24])
    a(f"""
    v_readlane_b32 s14, v24, 63
    v_mov_b32 v25, {H(1/512)}
    v_mul_f32 v25, s14, v25
    """)
    rbf(a, 26, 25)
    for k in range(8):
        a(f'v_sub_f32 v{DD+k}, v{X1+k}, v26')
    a(f'v_mul_f32 v24, v{DD}, v{DD}')
    a(f'v_mul_f32 v27, v{DD}, v{GW}')
    for k in range(1, 8):
        a(f'v_fmac_f32 v24, v{DD+k}, v{DD+k}')
        a(f'v_fmac_f32 v27, v{DD+k}, v{GW+k}')
    wave_sum(a, [24, 27])
    a(f"""
    v_sub_f32 v25, v25, v26
    v_readlane_b32 s14, v24, 63
    v_readlane_b32 s15, v27, 63
    v_mul_f32 v25, v25, v25
    v_mov_b32 v27, {H(1/512)}
    v_fma_f32 v25, s14, v27, -v25
    v_max_f32 v25, 0, v25
    """)
    rbf(a, 25, 25)
    a(f'v_add_f32 v25, {H(1e-5)}, v25')
    rbf(a, 25, 25)
    a('v_sqrt_f32 v25, v25')
    rbf(a, 25, 25)
    a(f"""
    v_rcp_f32 v25, v25
    v_mov_b32 v26, s56
    v_mul_f32 v27, s15, v25
    v_add_f32 v27, v27, v26
    v_cvt_pk_bf16_f32 v27, v27, v27
    v_and_b32 v27, 0xffff, v27
    v_xor_b32 v28, 0x8000, v27
    v_xor_b32 v29, 0xffff, v27
    v_cmp_le_u32 vcc, 0x8000, v27
    v_cndmask_b32 v27, v28, v29, vcc
    s_lshl_b32 s14, {sQ}, 3
    s_add_u32 s14, s14, {sW}
    s_sub_u32 s57, 0xffff, s14
    v_lshl_or_b32 v27, v27, 16, s57
    s_lshl_b32 s14, {sW}, 2
    s_add_u32 s14, s14, {L_KEYS}
    v_mov_b32 v28, s14
    ds_write_b32 v28, v27
    """)
    for k in range(8):
        a(f'v_mul_f32 v{DD+k}, v{DD+k}, v25')
    for k in range(8):
        a(f'v_fma_f32 v{DD+k}, v{DD+k}, v{G2+k}, v{SB+k}')
    for k in range(4):
        a(f'v_cvt_pk_bf16_f32 v{H2P+k}, v{DD+2*k}, v{DD+2*k+1}')
    a(f"""
    v_mov_b32 v28, {L_KEYS}
    s_waitcnt lgkmcnt(0)
    s_barrier
    ds_read_b128 v[32:35], v28
    ds_read_b128 v[36:39], v28 offset:16
    s_waitcnt lgkmcnt(0)
    v_max_u32 v2, v32, v33
    v_min_u32 v3, v32, v33
    """)
    for k in range(2, 8):
        a(f"""
        v_min_u32 v13, v2, v{32+k}
        v_max_u32 v2, v2, v{32+k}
        v_max_u32 v3, v3, v13
        """)
    a(f"""
    v_readfirstlane_b32 s58, v2
    v_readfirstlane_b32 s59, v3
    v_readfirstlane_b32 s14, v27
    s_cmp_eq_u32 s14, s58
    s_cselect_b32 s15, 0, 2
    s_cmp_eq_u32 s14, s59
    s_cselect_b32 s15, 1, s15
    s_cmp_eq_u32 s15, 2
    s_cbranch_scc1 L_nocand
    s_lshl_b32 s14, {sQ}, 1
    s_add_u32 s14, s14, s15
    s_lshl_b32 s14, s14, 11
    s_add_u32 s14, s14, {WS_ROWH}
    v_lshl_add_u32 v13, v{vL}, 4, s14
    v_add_u32 v14, {WS_ROWX - WS_ROWH}, v13
    v_mov_b32 v32, v{H2P}
    v_mov_b32 v33, v{H2P+1}
    v_mov_b32 v34, {sNONCE}
    v_mov_b32 v35, {sNONCE}
    v_mov_b32 v36, v{H2P+2}
    v_mov_b32 v37, v{H2P+3}
    v_mov_b32 v38, {sNONCE}
    v_mov_b32 v39, {sNONCE}
    global_store_dwordx4 v13, v[32:35], {sWS} sc1
    global_store_dwordx4 v13, v[36:39], {sWS} offset:1024 sc1
    v_mov_b32 v40, v{X1P}
    v_mov_b32 v41, v{X1P+1}
    v_mov_b32 v42, {sNONCE}
    v_mov_b32 v43, {sNONCE}
    v_mov_b32 v44, v{X1P+2}
    v_mov_b32 v45, v{X1P+3}
    v_mov_b32 v46, {sNONCE}
    v_mov_b32 v47, {sNONCE}
    global_store_dwordx4 v14, v[40:43], {sWS} sc1
    global_store_dwordx4 v14, v[44:47], {sWS} offset:1024 sc1
    """)
    a.label('L_nocand')
    a(f"""
    s_cmp_eq_u32 {sW}, 7
    s_cbranch_scc0 L_nokey
    v_cmp_gt_u32 vcc, 4, v{vL}
    s_and_saveexec_b64 s[54:55], vcc
    s_lshl_b32 s14, {sQ}, 6
    s_add_u32 s14, s14, {WS_KEY}
    v_lshl_add_u32 v13, v{vL}, 4, s14
    v_mov_b32 v32, s58
    v_mov_b32 v33, s59
    v_mov_b32 v34, {sNONCE}
    v_mov_b32 v35, {sNONCE}
    global_store_dwordx4 v13, v[32:35], {sWS} sc1
    s_mov_b64 exec, s[54:55]
    """)
    a.label('L_nokey')
    stamp(11)
    for k in range(4):
        a(f'v_lshlrev_b32 v{DD+2*k}, 16, v{H2P+k}')
        a(f'v_and_b32 v{DD+2*k+1}, 0xffff0000, v{H2P+k}')
        a(f'v_lshlrev_b32 v{X1+2*k}, 16, v{X1P+k}')
        a(f'v_and_b32 v{X1+2*k+1}, 0xffff0000, v{X1P+k}')
    for k in range(8):
        a(f'v_mul_f32 v{DD+k}, v{DD+k}, v{GB+k}')
    for k in range(0, 8, 2):
        a(f'v_cvt_pk_bf16_f32 v27, v{DD+k}, v{DD+k+1}')
        a(f'v_lshlrev_b32 v{DD+k}, 16, v27')
        a(f'v_and_b32 v{DD+k+1}, 0xffff0000, v27')
    for k in range(8):
        a(f'v_add_f32 v{DD+k}, v{DD+k}, v{X1+k}')
    for k in range(4):
        a(f'v_cvt_pk_bf16_f32 v{OUTP+k}, v{DD+2*k}, v{DD+2*k+1}')
    if stop == 'p3':
        a(f"""
        s_lshl_b32 s14, {sQ}, 3
        s_add_u32 s14, s14, {sW}
        s_lshl_b32 s14, s14, 10
        v_lshl_add_u32 v2, v{vL}, 4, s14
        global_store_dwordx4 v2, v[{OUTP}:{OUTP+3}], {sOUT}
        s_waitcnt vmcnt(0)
        """)
        finish()
        a('s_branch L_end')


    L_A  = L_RED
    L_A2 = L_RED + 2048
    A2ROW = 2768
    L_PART = L_RED + 8192
    L_GUO = L_RED + 10240 + 64
    a(f"""
    s_cmp_lt_u32 {sQ}, 86
    s_cbranch_scc0 L_notgu
    s_cmp_eq_u32 {sW}, 0
    s_cbranch_scc0 L_t2wait
    v_lshlrev_b32 v2, 6, v{vL}
    v_add_u32 v2, {WS_KEY + 4096}, v2
    v_add_u32 v3, 8192, v2
    s_mov_b32 s14, 0
    """)
    a.label('L_e3poll')
    a(f"""
    global_load_dwordx4 v[32:35], v2, {sWS} offset:-4096 sc1
    global_load_dwordx4 v[36:39], v2, {sWS} sc1
    global_load_dwordx4 v[40:43], v3, {sWS} offset:-4096 sc1
    global_load_dwordx4 v[44:47], v3, {sWS} sc1
    s_add_u32 s14, s14, 1
    s_waitcnt vmcnt(0)
    v_xor_b32 v13, {sNONCE}, v34
    v_xor_b32 v14, {sNONCE}, v38
    v_xor_b32 v27, {sNONCE}, v42
    v_xor_b32 v28, {sNONCE}, v46
    v_or3_b32 v13, v13, v14, v27
    v_or_b32 v13, v13, v28
    v_cmp_ne_u32 vcc, 0, v13
    s_cmp_ge_u32 s14, 0x40000
    s_cbranch_scc1 L_e3got
    s_cbranch_vccnz L_e3poll
    """)
    a.label('L_e3got')
    def merge(a1, a2):
        a(f'v_min_u32 v13, v32, v{a1}')
        a(f'v_max_u32 v32, v32, v{a1}')
        a(f'v_max3_u32 v33, v13, v33, v{a2}')
    merge(36, 37); merge(40, 41); merge(44, 45)
    for step in ('row_shr:1 row_mask:0xf bank_mask:0xf bound_ctrl:0', 'row_shr:2 row_mask:0xf bank_mask:0xf bound_ctrl:0',
                 'row_shr:4 row_mask:0xf bank_mask:0xf bound_ctrl:0', 'row_shr:8 row_mask:0xf bank_mask:0xf bound_ctrl:0',
                 'row_bcast:15 row_mask:0xa bank_mask:0xf', 'row_bcast:31 row_mask:0xc bank_mask:0xf'):
        if 'bcast' in step:
            a('v_mov_b32 v36, 0\nv_mov_b32 v37, 0')
        a(f'v_mov_b32_dpp v36, v32 {step}')
        a(f'v_mov_b32_dpp v37, v33 {step}')
        merge(36, 37)
    a(f"""
    v_readlane_b32 s58, v32, 63
    v_readlane_b32 s59, v33, 63
    v_mov_b32 v2, {L_WINL}
    v_mov_b32 v32, s58
    v_mov_b32 v33, s59
    ds_write_b64 v2, v[32:33]
    s_cmp_eq_u32 {sQ}, 0
    s_cbranch_scc0 L_t2wait
    v_cmp_gt_u32 vcc, 4, v{vL}
    s_and_saveexec_b64 s[54:55], vcc
    v_lshlrev_b32 v13, 4, v{vL}
    v_add_u32 v13, {WS_WIN}, v13
    v_mov_b32 v34, {sNONCE}
    v_mov_b32 v35, {sNONCE}
    global_store_dwordx4 v13, v[32:35], {sWS} sc1
    s_mov_b64 exec, s[54:55]
    """)
    a.label('L_t2wait')
    a(f"""
    s_waitcnt lgkmcnt(0)
    s_barrier
    v_mov_b32 v2, {L_WINL}
    ds_read_b64 v[32:33], v2
    s_waitcnt lgkmcnt(0)
    v_readfirstlane_b32 s58, v32
    v_readfirstlane_b32 s59, v33
    """)
    stamp(12)
    def winners():
        a(f"""
        s_and_b32 s50, s58, 0xffff
        s_sub_u32 s50, 0xffff, s50
        s_and_b32 s51, s59, 0xffff
        s_sub_u32 s51, 0xffff, s51
        s_lshr_b32 s52, s50, 3
        s_lshr_b32 s53, s51, 3
        s_cmp_eq_u32 s52, s53
        s_cselect_b32 s14, 1, 0
        s_lshl_b32 s52, s52, 12
        s_lshl_b32 s53, s53, 1
        s_add_u32 s53, s53, s14
        s_lshl_b32 s53, s53, 11
        """)
    winners()
    a(f"""
    s_cmp_ge_u32 {sW}, 4
    s_cbranch_scc1 L_rowdone
    s_cmp_ge_u32 {sW}, 2
    s_cselect_b32 s14, s53, s52
    s_cselect_b32 s15, 1024, 0
    s_add_u32 s14, s14, {WS_ROWH}
    v_and_b32 v13, 127, v0
    v_lshl_add_u32 v2, v13, 4, s14
    v_and_b32 v14, 63, v13
    v_lshlrev_b32 v14, 4, v14
    v_lshrrev_b32 v13, 6, v13
    v_lshl_add_u32 v14, v13, 3, v14
    s_add_u32 s15, s15, {L_A}
    v_add_u32 v14, s15, v14
    s_mov_b32 s14, 0
    """)
    a.label('L_rowpoll')
    a(f"""
    global_load_dwordx4 v[32:35], v2, {sWS} sc1
    s_add_u32 s14, s14, 1
    s_waitcnt vmcnt(0)
    v_cmp_ne_u32 vcc, {sNONCE}, v34
    s_cmp_ge_u32 s14, 0x40000
    s_cbranch_scc1 L_rowgot
    s_cbranch_vccnz L_rowpoll
    """)
    a.label('L_rowgot')
    a('ds_write_b64 v14, v[32:33]')
    a.label('L_rowdone')
    a('s_waitcnt vmcnt(0) lgkmcnt(0)\ns_barrier')
    stamp(13)
    def tr_lane_addr(dst):
        a(f"""
        v_lshrrev_b32 v3, 4, v{vL}
        v_bfe_u32 v{dst}, v{vL}, 2, 2
        v_lshl_add_u32 v{dst}, v3, 2, v{dst}
        v_lshlrev_b32 v{dst}, 5, v{dst}
        v_and_b32 v13, 3, v{vL}
        v_lshl_add_u32 v{dst}, v13, 3, v{dst}
        """)
    tr_lane_addr(2)
    a(f"""
    s_lshl_b32 s14, {sW}, 11
    s_add_u32 s14, s14, {L_W}
    v_add_u32 v2, s14, v2
    v_and_b32 v13, 1, v{vL}
    v_lshlrev_b32 v13, 10, v13
    v_lshl_add_u32 v13, v3, 3, v13
    s_lshl_b32 s14, {sW}, 7
    s_add_u32 s14, s14, {L_A}
    v_add_u32 v13, s14, v13
    """)
    for kk in range(2):
        a(f'ds_read_b64 v[{32+4*kk}:{33+4*kk}], v13 offset:{64*kk}')
        a(f'ds_read_b64 v[{34+4*kk}:{35+4*kk}], v13 offset:{64*kk+32}')
        for m in range(2):
            a(f'ds_read_b64_tr_b16 v[{40+16*m+4*kk}:{41+16*m+4*kk}], v2 offset:{16384*m + 1024*kk}')
            a(f'ds_read_b64_tr_b16 v[{42+16*m+4*kk}:{43+16*m+4*kk}], v2 offset:{16384*m + 1024*kk + 512}')
    a('s_waitcnt lgkmcnt(0)')
    for kk in range(2):
        for m in range(2):
            c = f'v[{72+4*m}:{75+4*m}]'
            a(f'v_mfma_f32_16x16x32_bf16 {c}, v[{32+4*kk}:{35+4*kk}], v[{40+16*m+4*kk}:{43+16*m+4*kk}], {"0" if kk == 0 else c}')
    a(f"""
    s_lshl_b32 s14, {sW}, 8
    s_add_u32 s14, s14, {L_PART}
    v_lshl_add_u32 v2, v{vL}, 2, s14
    v_cmp_gt_u32 vcc, 16, v{vL}
    s_and_saveexec_b64 s[54:55], vcc
    ds_write_b32 v2, v72
    ds_write_b32 v2, v73 offset:64
    ds_write_b32 v2, v76 offset:128
    ds_write_b32 v2, v77 offset:192
    s_mov_b64 exec, s[54:55]
    s_waitcnt lgkmcnt(0)
    s_barrier
    s_cmp_eq_u32 {sW}, 0
    s_cbranch_scc0 L_gudone
    v_and_b32 v2, 31, v{vL}
    v_lshlrev_b32 v2, 2, v2
    v_add_u32 v2, {L_PART}, v2
    """)
    for w in range(8):
        a(f'ds_read_b32 v{32+w}, v2 offset:{256*w}')
        a(f'ds_read_b32 v{40+w}, v2 offset:{256*w+128}')
    a('s_waitcnt lgkmcnt(0)')
    for w in range(1, 8):
        a(f'v_add_f32 v32, v32, v{32+w}')
        a(f'v_add_f32 v40, v40, v{40+w}')
    rbf(a, 32, 32); rbf(a, 40, 40)
    a(f"""
    v_mul_f32 v2, {H(-LOG2E)}, v32
    v_exp_f32 v2, v2
    v_add_f32 v2, 1.0, v2
    v_rcp_f32 v2, v2
    v_mul_f32 v2, v2, v32
    """)
    rbf(a, 2, 2)
    a(f"""
    v_mul_f32 v2, v2, v40
    v_cvt_pk_bf16_f32 v2, v2, v2
    v_and_b32 v3, 31, v{vL}
    v_lshlrev_b32 v3, 1, v3
    v_add_u32 v3, {L_GUO}, v3
    ds_write_b16 v3, v2
    v_lshlrev_b32 v13, 3, v{vL}
    v_add_u32 v13, {L_GUO}, v13
    s_waitcnt lgkmcnt(0)
    v_cmp_gt_u32 vcc, 8, v{vL}
    s_and_saveexec_b64 s[54:55], vcc
    ds_read_b64 v[32:33], v13
    s_lshl_b32 s14, {sQ}, 7
    s_add_u32 s14, s14, {WS_GU}
    v_lshl_add_u32 v13, v{vL}, 4, s14
    v_mov_b32 v34, {sNONCE}
    v_mov_b32 v35, {sNONCE}
    s_waitcnt lgkmcnt(0)
    global_store_dwordx4 v13, v[32:35], {sWS} sc1
    s_mov_b64 exec, s[54:55]
    """)
    a.label('L_gudone')
    stamp(14)
    a('s_branch L_outrows')
    a.label('L_notgu')
    a(f"""
    v_mov_b32 v2, {WS_WIN}
    s_mov_b32 s14, 0
    """)
    a.label('L_winpoll')
    a(f"""
    global_load_dwordx4 v[32:35], v2, {sWS} sc1
    s_add_u32 s14, s14, 1
    s_waitcnt vmcnt(0)
    v_readfirstlane_b32 s15, v34
    s_cmp_eq_u32 s15, {sNONCE}
    s_cbranch_scc1 L_wingot
    s_cmp_ge_u32 s14, 0x40000
    s_cbranch_scc1 L_wingot
    s_sleep 4
    s_branch L_winpoll
    """)
    a.label('L_wingot')
    a(f"""
    v_readfirstlane_b32 s58, v32
    v_readfirstlane_b32 s59, v33
    """)
    winners()
    stamp(12)
    a.label('L_outrows')
    a(f"""
    s_lshl_b32 s14, {sQ}, 3
    s_add_u32 s14, s14, {sW}
    s_cmp_eq_u32 s14, s50
    s_cbranch_scc1 L_skipout
    s_cmp_eq_u32 s14, s51
    s_cbranch_scc1 L_skipout
    s_lshl_b32 s14, s14, 10
    v_lshl_add_u32 v2, v{vL}, 4, s14
    global_store_dwordx4 v2, v[{OUTP}:{OUTP+3}], {sOUT}
    """)
    a.label('L_skipout')
    a(f"""
    s_sub_u32 s15, {sQ}, 96
    s_cmp_lt_u32 s15, 32
    s_cbranch_scc0 L_fin
    s_lshl_b32 s56, s15, 4
    v_and_b32 v13, 15, v{vL}
    v_bfe_u32 v14, v{vL}, 4, 1
    v_add_u32 v13, s56, v13
    v_cmp_eq_u32 vcc, 1, v14
    v_mov_b32 v27, s52
    v_mov_b32 v28, s53
    v_cndmask_b32 v27, v27, v28, vcc
    v_lshrrev_b32 v28, 3, v13
    v_bfe_u32 v29, v13, 2, 1
    v_lshlrev_b32 v29, 10, v29
    v_lshl_add_u32 v28, v28, 4, v29
    v_add_u32 v27, v27, v28
    v_mov_b32 v55, v13
    """)
    a(f"""
    v_add_u32 v27, {WS_ROWH}, v27
    v_add_u32 v28, {WS_ROWX - WS_ROWH}, v27
    v_lshrrev_b32 v29, 1, v13
    v_lshlrev_b32 v29, 3, v29
    v_add_u32 v29, {WS_MOD + 5*2048}, v29
    v_lshlrev_b32 v2, 4, v0
    v_add_u32 v2, {WS_GU}, v2
    v_add_u32 v3, 8192, v2
    v_cmp_gt_u32 vcc, 176, v0
    s_mov_b64 s[54:55], vcc
    v_bfe_u32 v30, v0, 2, 1
    v_mul_u32_u24 v30, {A2ROW}, v30
    v_lshrrev_b32 v31, 3, v0
    v_lshl_add_u32 v30, v31, 5, v30
    v_and_b32 v31, 3, v0
    v_lshl_add_u32 v30, v31, 3, v30
    v_add_u32 v30, {L_A2}, v30
    s_mov_b32 s14, 0
    """)
    a.label('L_e4poll')
    a(f"""
    global_load_dwordx4 v[32:35], v2, {sWS} sc1
    v_mov_b32 v38, {sNONCE}
    s_mov_b64 s[6:7], exec
    s_and_b64 exec, exec, s[54:55]
    global_load_dwordx4 v[36:39], v3, {sWS} sc1
    s_mov_b64 exec, s[6:7]
    global_load_dwordx4 v[40:43], v27, {sWS} sc1
    global_load_dwordx4 v[44:47], v28, {sWS} sc1
    global_load_dwordx2 v[48:49], v29, {sWS} sc1
    s_add_u32 s14, s14, 1
    s_waitcnt vmcnt(0)
    v_xor_b32 v50, {sNONCE}, v34
    v_xor_b32 v51, {sNONCE}, v38
    v_xor_b32 v52, {sNONCE}, v42
    v_xor_b32 v53, {sNONCE}, v46
    v_xor_b32 v54, {sNONCE}, v49
    v_or3_b32 v50, v50, v51, v52
    v_or3_b32 v50, v50, v53, v54
    v_cmp_ne_u32 vcc, 0, v50
    s_cmp_ge_u32 s14, 0x40000
    s_cbranch_scc1 L_e4got
    s_cbranch_vccnz L_e4poll
    """)
    a.label('L_e4got')
    stamp(13)
    a(f"""
    ds_write_b64 v30, v[32:33]
    s_mov_b64 s[6:7], exec
    s_and_b64 exec, exec, s[54:55]
    ds_write_b64 v30, v[36:37] offset:2048
    s_mov_b64 exec, s[6:7]
    """)
    tr_lane_addr(2)
    a(f"""
    s_lshl_b32 s14, {sW}, 10
    s_add_u32 s14, s14, {L_W}
    v_add_u32 v2, s14, v2
    v_and_b32 v31, 1, v{vL}
    v_mul_u32_u24 v31, {A2ROW}, v31
    v_lshl_add_u32 v31, v3, 3, v31
    s_lshl_b32 s14, {sW}, 6
    s_add_u32 s14, s14, {L_A2}
    v_add_u32 v31, s14, v31
    s_waitcnt lgkmcnt(0)
    s_barrier
    """)
    for i in range(5):
        a(f'ds_read_b64 v[{64+4*i}:{65+4*i}], v31 offset:{512*i}')
        a(f'ds_read_b64 v[{66+4*i}:{67+4*i}], v31 offset:{512*i+32}')
        a(f'ds_read_b64_tr_b16 v[{96+4*i}:{97+4*i}], v2 offset:{8192*i}')
        a(f'ds_read_b64_tr_b16 v[{98+4*i}:{99+4*i}], v2 offset:{8192*i+512}')
        if i == 2: pass
    a('s_waitcnt lgkmcnt(0)')
    for i in range(5):
        a(f'v_mfma_f32_16x16x32_bf16 v[72+20:75+20], v[{64+4*i}:{67+4*i}], v[{96+4*i}:{99+4*i}], {"0" if i == 0 else "v[92:95]"}'.replace('v[72+20:75+20]', 'v[92:95]'))
    a(f"""
    s_cmp_lt_u32 {sW}, 3
    s_cbranch_scc0 L_dn5
    ds_read_b64 v[64:65], v31 offset:{512*5}
    ds_read_b64 v[66:67], v31 offset:{512*5+32}
    ds_read_b64_tr_b16 v[96:97], v2 offset:{8192*5}
    ds_read_b64_tr_b16 v[98:99], v2 offset:{8192*5+512}
    s_waitcnt lgkmcnt(0)
    v_mfma_f32_16x16x32_bf16 v[92:95], v[64:67], v[96:99], v[92:95]
    """)
    a.label('L_dn5')
    a(f"""
    s_lshl_b32 s14, {sW}, 7
    s_add_u32 s14, s14, {L_PART}
    v_lshl_add_u32 v2, v{vL}, 2, s14
    v_cmp_gt_u32 vcc, 16, v{vL}
    s_and_saveexec_b64 s[54:55], vcc
    s_nop 7
    ds_write_b32 v2, v92
    ds_write_b32 v2, v93 offset:64
    s_mov_b64 exec, s[54:55]
    s_waitcnt lgkmcnt(0)
    s_barrier
    s_cmp_eq_u32 {sW}, 0
    s_cbranch_scc0 L_fin
    v_and_b32 v2, 31, v{vL}
    v_lshlrev_b32 v2, 2, v2
    v_add_u32 v2, {L_PART}, v2
    """)
    for w in range(8):
        a(f'ds_read_b32 v{64+w}, v2 offset:{128*w}')
    a(f"""
    v_mov_b32 v13, v55
    v_and_b32 v3, 3, v13
    v_cmp_le_u32 vcc, 2, v3
    v_cndmask_b32 v40, v40, v41, vcc
    v_cndmask_b32 v44, v44, v45, vcc
    v_and_b32 v3, 1, v13
    v_cmp_eq_u32 vcc, 1, v3
    v_lshlrev_b32 v50, 16, v40
    v_and_b32 v40, 0xffff0000, v40
    v_cndmask_b32 v40, v50, v40, vcc
    v_lshlrev_b32 v50, 16, v44
    v_and_b32 v44, 0xffff0000, v44
    v_cndmask_b32 v44, v50, v44, vcc
    v_lshlrev_b32 v50, 16, v48
    v_and_b32 v48, 0xffff0000, v48
    v_cndmask_b32 v48, v50, v48, vcc
    v_bfe_u32 v14, v{vL}, 4, 1
    v_cmp_eq_u32 vcc, 1, v14
    v_mov_b32 v50, s58
    v_mov_b32 v51, s59
    v_cndmask_b32 v50, v50, v51, vcc
    v_lshrrev_b32 v50, 16, v50
    v_xor_b32 v51, 0x8000, v50
    v_xor_b32 v52, 0xffff, v50
    s_mov_b32 s14, 0x8000
    v_cmp_le_u32 s[6:7], s14, v50
    v_cndmask_b32 v50, v52, v51, s[6:7]
    v_lshlrev_b32 v50, 16, v50
    v_mul_f32 v50, {H(-LOG2E)}, v50
    v_exp_f32 v50, v50
    v_add_f32 v50, 1.0, v50
    v_rcp_f32 v50, v50
    v_mov_b32 v51, s50
    v_mov_b32 v52, s51
    v_cndmask_b32 v51, v51, v52, vcc
    v_lshlrev_b32 v51, 10, v51
    v_lshl_add_u32 v51, v13, 1, v51
    """)
    rbf(a, 50, 50)
    a('s_waitcnt lgkmcnt(0)')
    for w in range(1, 8):
        a(f'v_add_f32 v64, v64, v{64+w}')
    rbf(a, 64, 64)
    a('v_mul_f32 v64, v64, v50')
    rbf(a, 64, 64)
    a('v_add_f32 v64, v64, v40')
    rbf(a, 64, 64)
    a('v_mul_f32 v64, v64, v48')
    rbf(a, 64, 64)
    a(f"""
    v_add_f32 v64, v64, v44
    v_cvt_pk_bf16_f32 v64, v64, v64
    v_cmp_gt_u32 vcc, 32, v{vL}
    s_and_saveexec_b64 s[54:55], vcc
    global_store_short v51, v64, {sOUT}
    s_mov_b64 exec, s[54:55]
    """)
    a.label('L_fin')
    stamp(15)
    finish()

    a.label('L_end')
    a('s_endpgm')
    return a

HEADER = open('adaLN_cond__ssm_conv_s4d__moe_arch_mod__prompt.s.ref').read().split('; Override launch geometry')[0]

def emit(path, **kw):
    a = build(**kw)
    body = a.finalize()
    s = HEADER + f'; @launch grid=(256,1,1) block=(512,1,1) lds={LDS_SIZE}\n'
    s += f'.amdgcn_target "amdgcn-amd-amdhsa--gfx950"\n.text\n.globl {KN}\n.p2align 8\n.type {KN},@function\n{KN}:\n'
    s += body
    s += f'''.section .rodata,"a"
.p2align 6
.amdhsa_kernel {KN}
  .amdhsa_next_free_vgpr 256
  .amdhsa_next_free_sgpr 96
  .amdhsa_accum_offset 256
  .amdhsa_group_segment_fixed_size 0
  .amdhsa_kernarg_size 136
  .amdhsa_user_sgpr_count 2
  .amdhsa_user_sgpr_kernarg_segment_ptr 1
  .amdhsa_system_sgpr_workgroup_id_x 1
.end_amdhsa_kernel
'''
    open(path, 'w').write(s)
    return a

if __name__ == '__main__':
    import argparse
    ap = argparse.ArgumentParser()
    ap.add_argument('-o', default='adaLN_cond__ssm_conv_s4d__moe_arch_mod__prompt.s')
    ap.add_argument('--stop', default=None)
    ap.add_argument('--prof', default=None)
    args = ap.parse_args()
    a = emit(args.o, stop=args.stop, prof=args.prof)
    print('pads', a.pads, 'lines', len(a.lines))
```
